```python
import torch

def _softmax(x, axis=-1):
    return torch.softmax(x, dim=axis)
def _gelu(x):
    return torch.nn.functional.gelu(x, approximate="tanh")
def _silu(x):
    return torch.nn.functional.silu(x)
def _sigmoid(x):
    return torch.sigmoid(x)
def _layernorm(x, axis=-1, eps=1e-5):
    m = x.mean(dim=axis, keepdim=True)
    v = x.var(dim=axis, keepdim=True, unbiased=False)
    return (x - m) / torch.sqrt(v + eps)
def _scatter_add(tgt, idx, src, axis=0):
    return tgt.clone().index_add_(axis, idx, src)
def _segment_sum(src, seg, n):
    out = torch.zeros((n,) + src.shape[1:], dtype=src.dtype)
    return out.index_add_(0, seg, src)
def _pad(x, pw):
    flat = tuple(v for pair in reversed(pw) for v in pair)
    return torch.nn.functional.pad(x, flat)

kernel_name = 'gated_mix__ssm_conv_s4d__ssm_conv_h3__prompt'

def setup_inputs():

    _w = (lambda a: (lambda t: t.to(torch.bfloat16) if t.is_floating_point() else t)(torch.as_tensor(a)))
    def _A_setup():
        Bsz, L, D, N = 1, 2048, 1024, 128
        return {
            "u": _w((lambda *s: torch.randn(*s, dtype=torch.bfloat16) * 0.05)(Bsz, L, D)),
            "log_A_real": _w((lambda *s: torch.randn(*s, dtype=torch.bfloat16) * 3.2)(D, N) * 0.5),
            "A_imag": _w((lambda *s: torch.randn(*s, dtype=torch.bfloat16) * 0.05)(D, N) * 3.14),
            "C_real": _w((lambda *s: torch.randn(*s, dtype=torch.bfloat16) * 0.1)(D, N) / N ** 0.5),
            "C_imag": _w((lambda *s: torch.randn(*s, dtype=torch.bfloat16) * 0.1)(D, N) / N ** 0.5),
            "log_dt": _w((lambda *s: torch.randn(*s, dtype=torch.bfloat16) * 0.05)(D) * 0.5 - 4.0),
            "D_skip": _w((lambda *s: torch.randn(*s, dtype=torch.bfloat16) * 0.05)(D)),
        }
    _A_in = _A_setup()

    def _B_setup():
        B, S, D = 1, 2048, 1024
        ks = 4
        return {
            "q": _w((lambda *s: torch.randn(*s, dtype=torch.bfloat16) * 0.05)(B, S, D)),
            "k": _w((lambda *s: torch.randn(*s, dtype=torch.bfloat16) * 0.4)(B, S, D)),
            "v": _w((lambda *s: torch.randn(*s, dtype=torch.bfloat16) * 0.2)(B, S, D)),
            "shift_k": _w((lambda *s: torch.randn(*s, dtype=torch.bfloat16) * 0.4)(D, ks) * 0.5),
            "ssm_k": _w((lambda *s: torch.randn(*s, dtype=torch.bfloat16) * 0.4)(D, S) * (1.0 / S ** 0.5)),
            "ssm_D": _w((lambda *s: torch.randn(*s, dtype=torch.bfloat16) * 0.4)(D)),
        }
    _B_in = _B_setup()

    return {
        "A_u": _A_in["u"],
        "A_log_A_real": _A_in["log_A_real"],
        "A_A_imag": _A_in["A_imag"],
        "A_C_real": _A_in["C_real"],
        "A_C_imag": _A_in["C_imag"],
        "A_log_dt": _A_in["log_dt"],
        "A_D_skip": _A_in["D_skip"],
        "B_q": _B_in["q"],
        "B_k": _B_in["k"],
        "B_v": _B_in["v"],
        "B_shift_k": _B_in["shift_k"],
        "B_ssm_k": _B_in["ssm_k"],
        "B_ssm_D": _B_in["ssm_D"],
        "gate_w": _w((lambda *s: torch.randn(*s, dtype=torch.bfloat16) * 0.05)(1024) * 16.0),
    }

def reference(A_u, A_log_A_real, A_A_imag, A_C_real, A_C_imag, A_log_dt, A_D_skip, B_q, B_k, B_v, B_shift_k, B_ssm_k, B_ssm_D, gate_w):
    def _A_ref(u, log_A_real, A_imag, C_real, C_imag, log_dt, D_skip):
        L = u.shape[1]
        dt = torch.exp(log_dt)
        A = -torch.exp(log_A_real) + 1j * A_imag
        C = (C_real + 1j * C_imag) * dt[:, None]
        pos = (lambda x, dt: x.to(dt))(torch.arange(L), log_dt.dtype)
        P = torch.exp((A * dt[:, None])[:, :, None] * pos[None, None, :])
        K = 2.0 * torch.einsum("dn,dnl->dl", C, P).real
        L2 = 2 * L
        u_t = (lambda x, *d: x.permute(*d))(u, 0, 2, 1)
        Kf = (lambda x, *a, **k: torch.fft.rfft(x.float(), *a, **k))(K, L2)
        Uf = (lambda x, *a, **k: torch.fft.rfft(x.float(), *a, **k))(u_t, L2)
        y = (lambda x, *a, **k: torch.fft.irfft(x, *a, **k).to(torch.bfloat16))(Uf * Kf[None, :, :], L2)[:, :, :L]
        y = (lambda x, *d: x.permute(*d))(y, 0, 2, 1)
        return y + u * D_skip[None, None, :]

    def _B_ref(q, k, v, shift_k, ssm_k, ssm_D):
        B, S, D = q.shape
        ks = shift_k.shape[-1]
        k_pad = _pad(k, ((0, 0), (ks - 1, 0), (0, 0)))
        k_shift = torch.zeros_like(k)
        for t in range(ks):
            k_shift = k_shift + k_pad[:, t:t + S, :] * shift_k[:, ks - 1 - t][None, None, :]
        kv = k_shift * v
        L = 2 * S
        kv_pad = _pad(kv, ((0, 0), (0, S), (0, 0)))
        kf_pad = _pad(ssm_k, ((0, 0), (0, S)))
        kv_f = (lambda x, axes=(-2,-1): torch.fft.rfft2(x.float(), dim=axes))(kv_pad[:, None, :, :], axes=(1, 2))
        kf_f = (lambda x, axes=(-2,-1): torch.fft.rfft2(x.float(), dim=axes))(kf_pad[:, None, :], axes=(1, 2))
        kf_f = (lambda x, *d: x.permute(*d))(kf_f, 1, 2, 0)
        y_f = kv_f * kf_f[None, :, :, :]
        y = (lambda x, s, axes=(-2,-1): torch.fft.irfft2(x, s=s, dim=axes).to(torch.bfloat16))(y_f, (1, L), axes=(1, 2))[:, 0, :S, :]
        y = y + kv * ssm_D[None, None, :]
        return q * y

    x = A_u
    g = _sigmoid((x * gate_w).sum(-1, keepdims=True))
    a = _A_ref(x, A_log_A_real, A_A_imag, A_C_real, A_C_imag, A_log_dt, A_D_skip)
    b = _B_ref(x, B_k, B_v, B_shift_k, B_ssm_k, B_ssm_D)
    return g * a + (1 - g) * b
```

```python
import re
TRANS = {'v_exp_f32','v_log_f32','v_rcp_f32','v_rsq_f32','v_sqrt_f32','v_sin_f32','v_cos_f32'}
REG_RE = re.compile(r'\b([vs])\[(\d+):(\d+)\]|\b([vs])(\d+)\b|\b(vcc|exec|m0)\b')

def regs_of(tok):
    out = []
    for m in REG_RE.finditer(tok):
        if m.group(1):
            out += [(m.group(1), i) for i in range(int(m.group(2)), int(m.group(3)) + 1)]
        elif m.group(4):
            out.append((m.group(4), int(m.group(5))))
        else:
            out.append((m.group(6), 0))
    return out

class Ins:
    __slots__ = ('text','op','kind','w','r','trans','dpp','wide','srcc','nop','lds_dma')
    def __init__(self, text):
        self.text = text
        self.w = set(); self.r = set(); self.trans = False; self.dpp = False; self.wide = False
        self.srcc = None; self.nop = 0; self.lds_dma = False
        t = text.split(';')[0].strip()
        if not t or t.endswith(':') or t.startswith('.'):
            self.kind = 'meta'; self.op = ''; return
        parts = t.split(None, 1)
        op = parts[0]; self.op = op
        rest = parts[1] if len(parts) > 1 else ''
        ops = [o.strip() for o in rest.split(',')] if rest else []
        base = op.replace('_e32','').replace('_e64','').replace('_dpp','')
        if op == 's_nop':
            self.kind = 'nop'; self.nop = int(ops[0], 0) + 1; return
        if op.startswith('v_mfma'):
            self.kind = 'mfma'
            self.w = set(regs_of(ops[0])); self.r = set(regs_of(ops[1]) + regs_of(ops[2]) + regs_of(ops[3]))
            self.srcc = tuple(regs_of(ops[3])); return
        if op.startswith('v_'):
            self.kind = 'valu'
            self.trans = base in TRANS
            self.dpp = ('row_' in t) or ('quad_perm' in t) or ('_dpp' in op)
            self.w = set(regs_of(ops[0]))
            for o in ops[1:]: self.r |= set(regs_of(o))
            if base.startswith('v_fmac') or base.startswith('v_dot2c') or 'swap' in base: self.r |= self.w
            if 'swap' in base: self.w |= set(regs_of(ops[1]))
            if base in ('v_add_co_u32','v_addc_co_u32','v_sub_co_u32'):
                self.w |= set(regs_of(ops[1]))
            if self.dpp and 'bank_mask' in t: self.r |= self.w
            return
        if op.startswith('ds_'):
            self.kind = 'ds'
            if op.startswith('ds_read') or op.startswith('ds_bpermute') or '_rtn' in op:
                self.w = set(regs_of(ops[0]))
                for o in ops[1:]: self.r |= set(regs_of(o))
                if 'd16' in op: self.r |= self.w
            else:
                for o in ops: self.r |= set(regs_of(o))
            return
        if op.startswith('buffer_') or op.startswith('global_'):
            self.kind = 'vmem'
            toks = t.split()
            if 'lds' in toks[1:]:
                self.lds_dma = True
                for o in ops: self.r |= set(regs_of(o))
                self.r.add(('m0', 0))
            elif '_load' in op or ('atomic' in op and (' sc0' in t)):
                self.w = set(regs_of(ops[0]))
                for o in ops[1:]: self.r |= set(regs_of(o))
            else:
                for o in ops: self.r |= set(regs_of(o))
                self.wide = ('x3' in op or 'x4' in op)
                if op.startswith('buffer_store'): self.srcc = tuple(regs_of(ops[0]))
                elif op.startswith('global_store'): self.srcc = tuple(regs_of(ops[1]))
            return
        if op.startswith('s_'):
            self.kind = 'salu'
            nodst = ('s_cmp','s_waitcnt','s_barrier','s_branch','s_cbranch','s_endpgm','s_setprio','s_sleep','s_bitcmp')
            if op.startswith(nodst):
                for o in ops: self.r |= set(regs_of(o))
            else:
                self.w = set(regs_of(ops[0]))
                for o in ops[1:]: self.r |= set(regs_of(o))
                if 'saveexec' in op: self.w.add(('exec', 0)); self.r.add(('exec', 0))
            return
        raise ValueError('unknown instr: ' + text)

def is_sreg(x): return x[0] in ('s', 'vcc', 'exec')

class Asm:
    def __init__(self): self.ins = []
    def __call__(self, text):
        for line in text.split('\n'):
            line = line.strip()
            if line: self.ins.append(Ins(line))
    def need(self, prev, cur):
        n = 0
        pw, pr = prev.w, prev.r
        if prev.kind == 'valu':
            vw = {x for x in pw if x[0] == 'v'}
            sw = {x for x in pw if is_sreg(x)}
            if cur.kind == 'mfma' and (vw & cur.r): n = max(n, 2)
            if cur.kind == 'valu':
                if prev.trans and not cur.trans and (vw & cur.r): n = max(n, 1)
                if cur.dpp and (vw & cur.r): n = max(n, 2)
                if 'swap' in cur.op and (vw & cur.r): n = max(n, 2)
                if (cur.op.startswith('v_readfirstlane') or cur.op.startswith('v_readlane')) and (vw & cur.r): n = max(n, 1)
                if sw & cur.r: n = max(n, 2)
                if cur.op.startswith('v_readlane') and (sw & cur.r): n = max(n, 4)
            if prev.trans and cur.kind in ('ds', 'vmem') and (vw & cur.r): n = max(n, 1)
            if cur.kind == 'vmem' and (sw & cur.r): n = max(n, 5)
            if cur.kind == 'salu' and (sw & cur.r): n = max(n, 2)
            if cur.kind == 'mfma' and ('exec', 0) in sw: n = max(n, 4)
        if prev.kind == 'mfma':
            if cur.kind == 'mfma':
                ab = cur.r - set(cur.srcc)
                if pw & ab: n = max(n, 8)
                if pw & set(cur.srcc):
                    if tuple(sorted(pw)) != tuple(sorted(cur.srcc)): n = max(n, 6)
                elif pw & cur.w: n = max(n, 8)
            else:
                if pw & (cur.r | cur.w): n = max(n, 8)
                if cur.kind == 'valu' and prev.srcc and (set(prev.srcc) & cur.w): n = max(n, 3)
        if prev.kind == 'salu' and ('m0', 0) in pw and cur.lds_dma: n = max(n, 1)
        if prev.kind == 'vmem' and prev.wide and prev.srcc:
            if set(prev.srcc) & cur.w: n = max(n, 2 if cur.kind in ('valu', 'mfma') else 1)
        return n
    def finalize(self):
        out = []
        hist = []
        pos = 0
        nnop = 0
        for ins in self.ins:
            if ins.kind == 'meta':
                out.append(ins.text); continue
            req = 0
            for p, ppos in hist[-14:]:
                dist = pos - ppos - 1
                nd = self.need(p, ins)
                if nd > dist: req = max(req, nd - dist)
            if req > 0:
                r = req
                while r > 0:
                    k = min(r, 16)
                    out.append('    s_nop %d' % (k - 1)); r -= k
                pos += req; nnop += 1
            out.append('    ' + ins.text)
            hist.append((ins, pos))
            pos += ins.nop if ins.kind == 'nop' else 1
        return out, nnop
```

```python
import sys
from asmlib import Asm

NAME = 'gated_mix__ssm_conv_s4d__ssm_conv_h3__prompt'
WS_QU, WS_QKV, WS_PA, WS_G = 0, 4 << 20, 8 << 20, 12 << 20
WS_SIZE = (12 << 20) + 8192
LOG2E = 0x3fb8aa3b
INV2PI = 0x3e22f983
USE_OMOD = True

def srd(a, d, ptr, size):
    a(f's_mov_b32 s{d}, s{ptr}')
    a(f's_and_b32 s{d+1}, s{ptr+1}, 0xffff')
    a(f's_mov_b32 s{d+2}, {size}')
    a(f's_mov_b32 s{d+3}, 0x20000')

def sq(a, zr, zi, t):
    a(f'v_mul_f32 v{t}, v{zi}, v{zi}')
    if USE_OMOD:
        a(f'v_mul_f32_e64 v{zi}, v{zr}, v{zi} mul:2')
    else:
        a(f'v_mul_f32 v{zi}, v{zr}, v{zi}')
        a(f'v_add_f32 v{zi}, v{zi}, v{zi}')
    a(f'v_fma_f32 v{zr}, v{zr}, v{zr}, -v{t}')

K1_XT, K1_VT, K1_KT = 0, 16384, 32768
K1_PAR = 50176
K1_PART = K1_PAR + 8 * 1280
K1_PP = K1_PART + 16384
K1_LDS = K1_PP + 16384

def gen_kgen_main(a, PARB, acc, base):
    P = [base, base + 20]
    Z = base + 40
    T = base + 56
    Y = base + 64
    X = base + 80
    def rd(s):
        p = P[s & 1]
        for e in range(4):
            a(f'ds_read_b128 v[{p+4*e}:{p+4*e+3}], v{PARB} offset:{s*256+e*16}')
        a(f'ds_read_b128 v[{p+16}:{p+19}], v{PARB+1} offset:{s*64}')
    rd(0)
    for s in range(4):
        p = P[s & 1]
        if s < 3:
            rd(s + 1); a('s_waitcnt lgkmcnt(5)')
        else:
            a('s_waitcnt lgkmcnt(0)')
        zr = [Z + 4*e for e in range(4)]; zi = [Z + 4*e + 1 for e in range(4)]
        xr = [Z + 4*e + 2 for e in range(4)]; xn = [Z + 4*e + 3 for e in range(4)]
        t = [T + 2*e for e in range(4)]; t2 = [T + 2*e + 1 for e in range(4)]
        E = range(4)
        for e in E: a(f'v_mul_f32 v{t[e]}, v{p+4*e}, v3')
        for e in E: a(f'v_mul_f32 v{t2[e]}, v{p+4*e+1}, v3')
        for e in E: a(f'v_exp_f32 v{t[e]}, v{t[e]}')
        for e in E: a(f'v_fract_f32 v{t2[e]}, v{t2[e]}')
        for e in E: a(f'v_cos_f32 v{zr[e]}, v{t2[e]}')
        for e in E: a(f'v_sin_f32 v{zi[e]}, v{t2[e]}')
        for e in E: a(f'v_mul_f32 v{zr[e]}, v{zr[e]}, v{t[e]}')
        for e in E: a(f'v_mul_f32 v{zi[e]}, v{zi[e]}, v{t[e]}')
        def sqall():
            for e in E: a(f'v_mul_f32 v{t[e]}, v{zi[e]}, v{zi[e]}')
            if USE_OMOD:
                for e in E: a(f'v_mul_f32_e64 v{zi[e]}, v{zr[e]}, v{zi[e]} mul:2')
            else:
                for e in E: a(f'v_mul_f32 v{zi[e]}, v{zr[e]}, v{zi[e]}')
                for e in E: a(f'v_add_f32 v{zi[e]}, v{zi[e]}, v{zi[e]}')
            for e in E: a(f'v_fma_f32 v{zr[e]}, v{zr[e]}, v{zr[e]}, -v{t[e]}')
        for b in range(4):
            for e in E: a(f'v_cvt_pk_bf16_f32 v{Y+4*b+e}, v{zr[e]}, v{zi[e]}')
            sqall()
        for e in E: a(f'v_mul_f32 v{t[e]}, v{p+4*e+3}, v{zi[e]}')
        for e in E: a(f'v_mul_f32 v{t2[e]}, v{p+4*e+3}, v{zr[e]}')
        for e in E: a(f'v_fma_f32 v{xr[e]}, v{p+4*e+2}, v{zr[e]}, -v{t[e]}')
        for e in E: a(f'v_fma_f32 v{xn[e]}, -v{p+4*e+2}, v{zi[e]}, -v{t2[e]}')
        for e in E: a(f'v_cvt_pk_bf16_f32 v{X+e}, v{xr[e]}, v{xn[e]}')
        for b in range(1, 4):
            for e in E: a(f'v_mul_f32 v{t[e]}, v{xn[e]}, v{zi[e]}')
            for e in E: a(f'v_mul_f32 v{t2[e]}, v{xn[e]}, v{zr[e]}')
            for e in E: a(f'v_fma_f32 v{xn[e]}, -v{xr[e]}, v{zi[e]}, v{t2[e]}')
            for e in E: a(f'v_fma_f32 v{xr[e]}, v{xr[e]}, v{zr[e]}, v{t[e]}')
            for e in E: a(f'v_cvt_pk_bf16_f32 v{X+4*b+e}, v{xr[e]}, v{xn[e]}')
            if b < 3: sqall()
        for e in E: a(f'v_cndmask_b32 v{X+12+e}, v{X+12+e}, v{p+16+e}, s[52:53]')
        for b in range(4):
            c = f'v[{acc+4*b}:{acc+4*b+3}]' if s > 0 else '0'
            a(f'v_mfma_f32_16x16x32_bf16 v[{acc+4*b}:{acc+4*b+3}], v[{Y+4*b}:{Y+4*b+3}], v[{X+4*b}:{X+4*b+3}], {c}')

def gen_expand(a, acc, paddr, tmp):
    A0, A01, A1, A2, A23, A3, A12, AD = [tmp + i for i in range(8)]
    def cv(b):
        k = acc + 4 * b
        a(f'v_cvt_pk_bf16_f32 v{A0}, v{k}, v{k}')
        a(f'v_cvt_pk_bf16_f32 v{A01}, v{k}, v{k+1}')
        a(f'v_cvt_pk_bf16_f32 v{A1}, v{k+1}, v{k+1}')
        a(f'v_cvt_pk_bf16_f32 v{A2}, v{k+2}, v{k+2}')
        a(f'v_cvt_pk_bf16_f32 v{A23}, v{k+2}, v{k+3}')
        a(f'v_cvt_pk_bf16_f32 v{A3}, v{k+3}, v{k+3}')
        a(f'v_cvt_pk_bf16_f32 v{A12}, v{k+1}, v{k+2}')
    M = tmp + 8
    a(f'v_lshlrev_b32 v{M}, 4, v4')
    a(f'v_lshl_add_u32 v{M}, v5, 2, v{M}')
    cv(3)
    a('s_mov_b64 exec, 1')
    a(f'v_add_u32 v{tmp+9}, 4088, v{paddr}')
    a(f'ds_write2_b32 v{tmp+9}, v{A0}, v{A0} offset0:0 offset1:1')
    a('s_mov_b64 exec, s[54:55]')
    a(f'v_lshlrev_b32 v{AD}, 4, v{M}')
    a(f'v_add3_u32 v{AD}, v{AD}, v{paddr}, -8')
    seq = [A0,A0,A0,A0,A01,A1,A1,A1,A2,A2,A2,A2,A23,A3,A3,A3]
    for i in range(8):
        a(f'ds_write2_b32 v{AD}, v{seq[2*i]}, v{seq[2*i+1]} offset0:{2*i} offset1:{2*i+1}')
    cv(2)
    a(f'v_lshlrev_b32 v{AD}, 3, v{M}')
    a(f'v_add3_u32 v{AD}, v{AD}, v{paddr}, -4')
    seq = [A0,A0,A01,A1,A2,A2,A23,A3]
    for i in range(4):
        a(f'ds_write2_b32 v{AD}, v{seq[2*i]}, v{seq[2*i+1]} offset0:{2*i} offset1:{2*i+1}')
    cv(1)
    a(f'v_lshlrev_b32 v{AD}, 2, v{M}')
    a(f'v_add3_u32 v{AD}, v{AD}, v{paddr}, -4')
    a(f'ds_write_b16 v{AD}, v{A0} offset:2')
    a(f'ds_write2_b32 v{AD}, v{A0}, v{A12} offset0:1 offset1:2')
    a(f'ds_write_b32 v{AD}, v{A2} offset:12')
    a(f'ds_write_b16 v{AD}, v{A3} offset:16')
    a('s_mov_b64 exec, -1')
    cv(0)
    a(f'v_lshlrev_b32 v{AD}, 1, v{M}')
    a(f'v_add_u32 v{AD}, v{AD}, v{paddr}')
    a(f'ds_write2_b32 v{AD}, v{A01}, v{A23} offset0:0 offset1:1')

def gen_k1():
    a = Asm()
    a('k1_kernel:')
    a('s_cmp_ge_u32 s2, 256')
    a('s_cbranch_scc1 K1_END')
    a('s_load_dwordx4 s[4:7], s[0:1], 0')
    a('s_load_dwordx4 s[8:11], s[0:1], 16')
    a('s_load_dwordx4 s[12:15], s[0:1], 32')
    a('s_load_dwordx2 s[16:17], s[0:1], 48')
    a('s_load_dwordx4 s[20:23], s[0:1], 64')
    a('s_load_dwordx2 s[24:25], s[0:1], 80')
    a('s_load_dwordx2 s[26:27], s[0:1], 104')
    a('s_load_dwordx2 s[28:29], s[0:1], 128')
    a('v_lshrrev_b32 v1, 6, v0')
    a('v_and_b32 v2, 63, v0')
    a('v_readfirstlane_b32 s48, v1')
    a('v_and_b32 v4, 15, v2')
    a('v_lshrrev_b32 v5, 4, v2')
    a('v_cvt_f32_u32 v3, v4')
    a('s_and_b32 s49, s48, 3')
    a('s_lshr_b32 s50, s48, 2')
    a('s_and_b32 s51, s2, 15')
    a('s_lshr_b32 s56, s2, 4')
    a('s_mov_b32 s52, 0x00010001'); a('s_mov_b32 s53, 0x00010001')
    a('s_mov_b32 s54, 0xff00ff00'); a('s_mov_b32 s55, 0xff00ff00')
    a('s_waitcnt lgkmcnt(0)')
    srd(a, 32, 4, 4 << 20); srd(a, 36, 20, 4 << 20); srd(a, 40, 22, 4 << 20); srd(a, 44, 28, WS_SIZE)
    a('s_lshl_b32 s57, s2, 10'); a('s_lshl_b32 s58, s49, 8'); a('s_add_u32 s57, s57, s58')
    a('s_lshl_b32 s58, s50, 7'); a('s_add_u32 s57, s57, s58')
    a('v_lshl_add_u32 v6, v2, 1, s57')
    a('global_load_ushort v10, v6, s[6:7]')
    a('global_load_ushort v11, v6, s[8:9]')
    a('global_load_ushort v12, v6, s[10:11]')
    a('global_load_ushort v13, v6, s[12:13]')
    a('s_lshl_b32 s57, s2, 3'); a('s_lshl_b32 s58, s49, 1'); a('s_add_u32 s57, s57, s58')
    a('v_mov_b32 v7, s57')
    a('global_load_ushort v14, v7, s[14:15]')
    a('global_load_ushort v15, v7, s[16:17]')
    a('s_lshl_b32 s57, s2, 3'); a('s_add_u32 s59, s57, s48')
    a('s_lshl_b32 s57, s59, 11')
    a('v_lshlrev_b32 v8, 5, v2')
    a('v_add_u32 v9, s57, v8')
    a('global_load_dwordx4 v[16:19], v9, s[4:5]')
    a('global_load_dwordx4 v[20:23], v9, s[4:5] offset:16')
    a('global_load_dwordx4 v[24:27], v8, s[26:27]')
    a('global_load_dwordx4 v[28:31], v8, s[26:27] offset:16')
    a('s_lshl_b32 s57, s51, 9'); a('s_lshl_b32 s58, s49, 7'); a('s_add_u32 s57, s57, s58')
    a('v_lshl_add_u32 v9, v4, 3, s57')
    a('global_load_dwordx2 v[32:33], v9, s[24:25]')
    a('v_lshrrev_b32 v34, 3, v2')
    a('v_and_b32 v35, 7, v2')
    a('v_and_b32 v36, 1, v5'); a('v_lshlrev_b32 v36, 1, v36')
    a('s_lshr_b32 s57, s48, 1'); a('s_and_b32 s57, s57, 1'); a('s_lshl_b32 s57, s57, 2')
    a('v_or_b32 v37, s57, v36')
    a('v_xor_b32 v37, v37, v35')
    a('v_lshlrev_b32 v37, 4, v37')
    a('v_lshl_add_u32 v37, v34, 11, v37')
    a('s_lshl_b32 s57, s56, 18'); a('s_lshl_b32 s58, s48, 15'); a('s_add_u32 s57, s57, s58')
    a('s_lshl_b32 s58, s51, 7'); a('s_add_u32 s60, s57, s58')
    a('s_lshl_b32 s61, s48, 11')
    a('v_lshrrev_b32 v38, 5, v2'); a('v_lshlrev_b32 v38, 1, v38')
    for h in range(2):
        a(f'v_or_b32 v39, {4*h}, v38'); a('v_xor_b32 v39, v39, v35'); a('v_lshlrev_b32 v39, 4, v39')
        a(f'v_lshl_add_u32 v{40+h}, v34, 11, v39')
    for h in range(2):
        a(f's_add_u32 s57, s60, {h*8*2048}')
        a(f's_add_u32 m0, s61, {K1_XT + h*1024}')
        a(f'buffer_load_dwordx4 v{40+h}, s[32:35], s57 offen lds')
        a(f's_add_u32 m0, s61, {K1_VT + h*1024}')
        a(f'buffer_load_dwordx4 v37, s[40:43], s57 offen lds')
    for h in range(2):
        a(f's_add_u32 s57, s60, {h*8*2048}')
        a(f's_sub_u32 s57, s57, {4*2048}')
        a(f'v_add_u32 v42, s57, v37')
        a(f's_add_u32 m0, s61, {K1_KT + h*1024}')
        a(f'buffer_load_dwordx4 v42, s[36:39], 0 offen lds')
    a('s_cmp_lg_u32 s48, 7'); a('s_cbranch_scc1 K1_NOX')
    a('v_xor_b32 v42, v36, v35'); a('v_lshlrev_b32 v42, 4, v42'); a('v_lshl_add_u32 v42, v34, 11, v42')
    a('s_lshl_b32 s57, s56, 18'); a(f's_add_u32 s57, s57, {124*2048}'); a('s_lshl_b32 s58, s51, 7'); a('s_add_u32 s57, s57, s58')
    a('v_add_u32 v42, s57, v42')
    a(f's_mov_b32 m0, {K1_KT + 128*128}')
    a('s_nop 0')
    a('buffer_load_dwordx4 v42, s[36:39], 0 offen lds')
    a('K1_NOX:')
    a('s_waitcnt vmcnt(11)')
    a(f's_mov_b32 s62, {LOG2E}'); a(f's_mov_b32 s63, {INV2PI}')
    for r in (10, 11, 12, 13, 14, 15): a(f'v_lshlrev_b32 v{r}, 16, v{r}')
    a('v_mul_f32 v14, s62, v14'); a('v_mul_f32 v10, s62, v10')
    a('v_exp_f32 v14, v14'); a('v_exp_f32 v10, v10')
    a('v_cvt_pk_bf16_f32 v14, v14, v14'); a('v_cvt_pk_bf16_f32 v10, v10, v10')
    a('v_lshlrev_b32 v14, 16, v14'); a('v_lshlrev_b32 v10, 16, v10')
    a('v_mul_f32 v44, v10, v14'); a('v_mul_f32 v45, v11, v14')
    a('v_mul_f32 v44, s62, v44'); a('v_sub_f32 v44, 0, v44')
    a('v_mul_f32 v45, s63, v45')
    a('v_add_f32 v14, v14, v14')
    a('v_mul_f32 v46, v12, v14'); a('v_mul_f32 v47, v13, v14')
    a(f's_mul_i32 s57, s48, 1280'); a(f's_add_u32 s57, s57, {K1_PAR}')
    a('v_lshl_add_u32 v48, v2, 4, s57')
    a('ds_write_b128 v48, v[44:47]')
    a('s_mov_b32 s58, 0x45000000')
    a('v_mul_f32 v50, s58, v44'); a('v_mul_f32 v51, s58, v45')
    a('v_exp_f32 v50, v50'); a('v_fract_f32 v51, v51')
    a('v_cos_f32 v52, v51'); a('v_sin_f32 v53, v51')
    a('v_mul_f32 v52, v52, v50'); a('v_mul_f32 v53, v53, v50')
    a('v_mul_f32 v54, v47, v53'); a('v_mul_f32 v55, v47, v52')
    a('v_fma_f32 v54, v46, v52, -v54'); a('v_fma_f32 v55, -v46, v53, -v55')
    a('v_cvt_pk_bf16_f32 v54, v54, v55')
    a('s_add_u32 s57, s57, 1024')
    a('v_lshl_add_u32 v49, v2, 2, s57')
    a('ds_write_b32 v49, v54')
    a('s_sub_u32 s58, s57, 1024')
    a('v_lshl_add_u32 v56, v5, 6, s58')
    a('v_lshl_add_u32 v57, v5, 4, s57')
    a('s_waitcnt vmcnt(7)')
    a('v_mov_b32 v58, 0'); a('v_mov_b32 v59, 0')
    for i in range(4):
        a(f'v_dot2c_f32_bf16 v58, v{16+i}, v{24+i}')
        a(f'v_dot2c_f32_bf16 v59, v{20+i}, v{28+i}')
    a('s_nop 3')
    a('v_add_f32 v58, v58, v59')
    for sh in (1, 2, 4, 8):
        a(f'v_add_f32_dpp v58, v58, v58 row_shr:{sh} row_mask:0xf bank_mask:0xf bound_ctrl:0')
    a('v_add_f32_dpp v58, v58, v58 row_bcast:15 row_mask:0xa bank_mask:0xf')
    a('v_add_f32_dpp v58, v58, v58 row_bcast:31 row_mask:0xc bank_mask:0xf')
    a('v_readlane_b32 s57, v58, 63')
    a('v_mov_b32 v58, s57')
    a('v_cvt_pk_bf16_f32 v58, v58, v58'); a('v_lshlrev_b32 v58, 16, v58')
    a('v_mul_f32 v58, s62, v58'); a('v_sub_f32 v58, 0, v58')
    a('v_exp_f32 v58, v58'); a('v_add_f32 v58, 1.0, v58'); a('v_rcp_f32 v58, v58')
    a('v_cvt_pk_bf16_f32 v58, v58, v58'); a('v_lshlrev_b32 v58, 16, v58')
    a('v_sub_f32 v59, 1.0, v58'); a('v_cvt_pk_bf16_f32 v58, v58, v59')
    a('s_lshl_b32 s57, s59, 2'); a(f's_add_u32 s57, s57, {WS_G}')
    a('v_mov_b32 v59, 0')
    a('s_mov_b64 exec, 1')
    a('buffer_store_dword v58, v59, s[44:47], s57 offen')
    a('s_mov_b64 exec, -1')
    ACC = 64
    a('s_waitcnt lgkmcnt(0)')
    gen_kgen_main(a, 56, ACC, 80)
    a(f's_lshl_b32 s57, s49, 12'); a(f's_add_u32 s57, s57, {K1_PART}')
    a('v_lshl_add_u32 v60, v2, 4, s57')
    a('s_cmp_eq_u32 s50, 0'); a('s_cbranch_scc1 K1_H0')
    for b in range(4): a(f'ds_write_b128 v60, v[{ACC+4*b}:{ACC+4*b+3}] offset:{b*1024}')
    a('K1_H0:')
    a('s_waitcnt vmcnt(0) lgkmcnt(0)')
    a('s_barrier')
    a('s_cmp_eq_u32 s50, 0'); a('s_cbranch_scc0 K1_KV')
    for b in range(4): a(f'ds_read_b128 v[{80+4*b}:{80+4*b+3}], v60 offset:{b*1024}')
    a('v_lshrrev_b32 v61, 2, v4')
    a('v_and_b32 v62, 3, v2')
    a('v_lshrrev_b32 v63, 1, v62')
    a('s_lshl_b32 s57, s49, 1'); a('v_add_u32 v63, s57, v63')
    a('v_lshlrev_b32 v100, 1, v61'); a('v_xor_b32 v63, v63, v100'); a('v_lshlrev_b32 v63, 4, v63')
    a('v_and_b32 v100, 1, v62'); a('v_lshl_add_u32 v63, v100, 3, v63')
    a('v_lshl_add_u32 v63, v61, 9, v63'); a('v_lshl_add_u32 v63, v5, 12, v63')
    for ph in range(4):
        for h in range(2):
            a(f'ds_read_b64_tr_b16 v[{104+4*ph+2*h}:{104+4*ph+2*h+1}], v63 offset:{K1_XT + (16*h+ph)*128}')
    a('s_waitcnt lgkmcnt(8)')
    for i in range(16): a(f'v_add_f32 v{ACC+i}, v{ACC+i}, v{80+i}')
    a('v_mov_b32 v100, 0'); a('s_mov_b64 s[64:65], 1')
    a('v_cndmask_b32 v100, v100, v15, s[64:65]'); a(f'v_add_f32 v{ACC}, v{ACC}, v100')
    a(f's_lshl_b32 s57, s49, 12'); a(f's_add_u32 s57, s57, {K1_PP}')
    a('v_mov_b32 v101, s57')
    gen_expand(a, ACC, 101, 120)
    a('s_lshl_b32 s57, s51, 18'); a('s_lshl_b32 s58, s49, 16'); a('s_add_u32 s57, s57, s58')
    a('s_lshl_b32 s58, s56, 6'); a('s_add_u32 s57, s57, s58')
    a('v_lshlrev_b32 v102, 12, v4'); a('v_lshl_add_u32 v102, v5, 4, v102'); a('v_add_u32 v102, s57, v102')
    a('s_waitcnt lgkmcnt(0)')
    for ph in range(4):
        a(f's_mov_b32 s58, {WS_QU + ph*1024}')
        a(f'buffer_store_dwordx4 v[{104+4*ph}:{104+4*ph+3}], v102, s[44:47], s58 offen')
    a('v_lshl_add_u32 v103, v2, 4, v101')
    for i in range(4): a(f'ds_read_b128 v[{80+4*i}:{80+4*i+3}], v103 offset:{i*1024}')
    a('s_lshl_b32 s57, s2, 14'); a('s_lshl_b32 s58, s49, 12'); a('s_add_u32 s57, s57, s58')
    a('v_lshl_add_u32 v103, v2, 4, s57')
    a('s_waitcnt lgkmcnt(0)')
    for i in range(4):
        a(f's_mov_b32 s58, {WS_PA + i*1024}')
        a(f'buffer_store_dwordx4 v[{80+4*i}:{80+4*i+3}], v103, s[44:47], s58 offen')
    a('s_branch K1_END')
    a('K1_KV:')
    a('v_lshrrev_b32 v61, 2, v4')
    a('v_and_b32 v62, 3, v2')
    a('v_lshrrev_b32 v63, 1, v62')
    a('s_lshl_b32 s57, s49, 1'); a('v_add_u32 v63, s57, v63')
    a('v_lshrrev_b32 v100, 1, v61'); a('v_lshlrev_b32 v100, 1, v100')
    a('v_and_b32 v101, 1, v5'); a('v_lshl_or_b32 v100, v101, 2, v100')
    a('v_xor_b32 v101, v63, v100')
    a('v_xor_b32 v102, 4, v101')
    a('v_and_b32 v100, 1, v62'); a('v_lshlrev_b32 v100, 3, v100')
    a('v_lshl_add_u32 v100, v61, 7, v100'); a('v_lshl_add_u32 v100, v5, 12, v100')
    a('v_lshl_add_u32 v101, v101, 4, v100'); a('v_lshl_add_u32 v102, v102, 4, v100')
    KD, VD, KF, KV = 64, 84, 104, 140
    for h in range(8): a(f'ds_read_b64_tr_b16 v[{KD+2*h}:{KD+2*h+1}], v101 offset:{K1_KT + 512*h}')
    a(f'ds_read_b64_tr_b16 v[{KD+16}:{KD+17}], v102 offset:{K1_KT + 512*8}')
    for h in range(8): a(f'ds_read_b64_tr_b16 v[{VD+2*h}:{VD+2*h+1}], v101 offset:{K1_VT + 512*h}')
    a('v_lshlrev_b32 v56, 16, v32'); a('v_and_b32 v57, 0xffff0000, v32')
    a('v_lshlrev_b32 v58, 16, v33'); a('v_and_b32 v59, 0xffff0000, v33')
    a('s_waitcnt lgkmcnt(8)')
    for d in range(18):
        a(f'v_lshlrev_b32 v{KF+2*d}, 16, v{KD+d}'); a(f'v_and_b32 v{KF+2*d+1}, 0xffff0000, v{KD+d}')
    for t in range(32): a(f'v_mul_f32 v{KV+t}, v56, v{KF+t+4}')
    for t in range(32): a(f'v_fmac_f32 v{KV+t}, v57, v{KF+t+3}')
    for t in range(32): a(f'v_fmac_f32 v{KV+t}, v58, v{KF+t+2}')
    for t in range(32): a(f'v_fmac_f32 v{KV+t}, v59, v{KF+t+1}')
    a('s_waitcnt lgkmcnt(0)')
    for d in range(16):
        a(f'v_lshlrev_b32 v{KF+2*d}, 16, v{VD+d}'); a(f'v_and_b32 v{KF+2*d+1}, 0xffff0000, v{VD+d}')
    for t in range(32): a(f'v_mul_f32 v{KV+t}, v{KV+t}, v{KF+t}')
    for ph in range(4):
        for jj in range(4):
            a(f'v_cvt_pk_bf16_f32 v{64+4*ph+jj}, v{KV+ph+8*jj}, v{KV+ph+8*jj+4}')
    a('s_lshl_b32 s57, s51, 18'); a('s_lshl_b32 s58, s49, 16'); a('s_add_u32 s57, s57, s58')
    a('s_lshl_b32 s58, s56, 6'); a('s_add_u32 s57, s57, s58')
    a('v_lshlrev_b32 v102, 12, v4'); a('v_lshl_add_u32 v102, v5, 4, v102'); a('v_add_u32 v102, s57, v102')
    for ph in range(4):
        a(f's_mov_b32 s58, {WS_QKV + ph*1024}')
        a(f'buffer_store_dwordx4 v[{64+4*ph}:{64+4*ph+3}], v102, s[44:47], s58 offen')
    a('K1_END:')
    a('s_endpgm')
    return a, 176, K1_LDS
```

```python
from asmlib import Asm
from gen1 import *

REG = 8736
QOFF = 4128
L2_G = 8 * REG
L2_TA = L2_G + 8192
TS = 5184
L2_TB = L2_TA + 4 * TS
K2_LDS = L2_TB + 4 * TS

class DSQ:
    def __init__(self, a): self.a = a; self.n = 0; self.done = 0
    def issue(self, text):
        self.a(text); self.n += 1; return self.n
    def wait(self, tag):
        if tag <= self.done: return
        k = min(self.n - tag, 15)
        self.a(f's_waitcnt lgkmcnt({k})')
        self.done = self.n - k
    def waitall(self):
        self.a('s_waitcnt lgkmcnt(0)'); self.done = self.n

def gen_conv(a, q, groups, AF, ACC, BR, NB, TMP, VA, VB, VIDX, VZERO, epilogue):
    atag = {}
    items = []
    for gi, grp in enumerate(groups):
        for ph in (3, 2, 1, 0):
            for mu in range(-1, 2 * max(grp) + 1):
                items.append((gi, ph, mu, [c for c in grp if mu <= 2 * c]))
    btag = {}
    def loadB(i):
        if i >= len(items): return
        gi, ph, mu, _ = items[i]
        s = BR + 4 * (i % NB)
        off = ph * 1152 + 64 * (mu + 1)
        q.issue(f'ds_read_b64 v[{s}:{s+1}], v{VB} offset:{off}')
        btag[i] = q.issue(f'ds_read_b64 v[{s+2}:{s+3}], v{VB} offset:{off+8}')
    def loadA(m):
        r = AF + 4 * m
        q.issue(f'ds_read_b64_tr_b16 v[{r}:{r+1}], v{VA} offset:{256*m+32}')
        atag[m] = q.issue(f'ds_read_b64_tr_b16 v[{r+2}:{r+3}], v{VA} offset:{256*m}')
    aorder = []
    for gi, ph, mu, cs in items:
        for c in cs:
            m = 2 * c - mu
            if m not in aorder: aorder.append(m)
    apend = list(aorder)
    nbl = 0
    def tmpreg(c, ph):
        for gi, grp in enumerate(groups):
            if c == max(grp) and gi < len(groups) - 1: return TMP + 8 + 3 * gi + (ph - 1)
        return TMP + c
    pend = []
    nm = [0]
    def shift_bperm(e):
        c, ph = e['c'], e['ph']
        e['tag'] = q.issue(f'ds_bpermute_b32 v{tmpreg(c,ph)}, v{VIDX}, v{ACC+4*c+3}')
        e['stage'] = 1; e['since'] = nm[0]
    def shift_fin(e):
        c, ph = e['c'], e['ph']
        q.wait(e['tag'])
        r = ACC + 4 * c
        prev = f'v{tmpreg(c-1,ph)}' if c > 0 else f'v{VZERO}'
        a(f'v_mov_b32 v{r+3}, v{r+2}'); a(f'v_mov_b32 v{r+2}, v{r+1}'); a(f'v_mov_b32 v{r+1}, v{r}')
        a(f'v_cndmask_b32 v{r}, v{tmpreg(c,ph)}, {prev}, s[64:65]')
        e['stage'] = 2
    def progress(force_c=None):
        for e in list(pend):
            if e['stage'] == 0 and (nm[0] - e['since'] >= 5 or force_c is not None):
                shift_bperm(e)
            elif e['stage'] == 1 and (nm[0] - e['since'] >= 6 or force_c is not None):
                shift_fin(e); pend.remove(e)
            if force_c is not None and e['c'] == force_c and e in pend:
                if e['stage'] == 0: shift_bperm(e)
                shift_fin(e); pend.remove(e)
            if e in pend and force_c is None: break
            if force_c is not None and e['c'] == force_c: break
    for i in range(min(2, NB)): loadB(i)
    nbl = min(2, NB)
    started = set()
    for i, (gi, ph, mu, cs) in enumerate(items):
        while nbl < min(i + NB, len(items)) and (q.n - q.done) <= 11 and not apend:
            loadB(nbl); nbl += 1
        if nbl <= i: loadB(nbl); nbl += 1
        for c in cs:
            m = 2 * c - mu
            while m not in atag:
                if q.n - q.done > 12: q.wait(q.n - 8)
                loadA(apend.pop(0))
            k = 0
            while apend and (q.n - q.done) <= 11 and k < 2:
                loadA(apend.pop(0)); k += 1
            if any(e['c'] == c for e in pend): progress(force_c=c)
            q.wait(btag[i]); q.wait(atag[m])
            s = BR + 4 * (i % NB)
            first = (ph == 3 and mu == -1)
            cin = '0' if first else f'v[{ACC+4*c}:{ACC+4*c+3}]'
            a(f'v_mfma_f32_16x16x32_bf16 v[{ACC+4*c}:{ACC+4*c+3}], v[{AF+4*m}:{AF+4*m+3}], v[{s}:{s+3}], {cin}')
            nm[0] += 1
            if mu == 2 * c and ph > 0:
                pend.append(dict(c=c, ph=ph, stage=0, since=nm[0], tag=None))
            progress()
            if nbl < min(i + NB, len(items)) and (q.n - q.done) <= 11 and not apend:
                loadB(nbl); nbl += 1
        last_of_group = (i + 1 == len(items)) or items[i + 1][0] != gi
        if last_of_group:
            assert not pend
            epilogue(gi, groups[gi])

def gen_k2(groups=((0,1,2,3,4,5,6,7),)):
    a = Asm(); q = DSQ(a)
    a('k2_kernel:')
    a('s_cmp_ge_u32 s2, 256')
    a('s_cbranch_scc1 K2_END')
    a('s_load_dwordx4 s[4:7], s[0:1], 88')
    a('s_load_dwordx2 s[8:9], s[0:1], 112')
    a('s_load_dwordx2 s[28:29], s[0:1], 128')
    a('v_lshrrev_b32 v1, 6, v0')
    a('v_and_b32 v2, 63, v0')
    a('v_readfirstlane_b32 s48, v1')
    a('v_and_b32 v4, 15, v2')
    a('v_lshrrev_b32 v5, 4, v2')
    a('s_and_b32 s49, s48, 3')
    a('s_lshr_b32 s50, s48, 2')
    a('s_and_b32 s51, s2, 7'); a('s_lshl_b32 s51, s51, 5'); a('s_lshr_b32 s56, s2, 3'); a('s_add_u32 s51, s51, s56')
    a('s_lshl_b32 s51, s51, 2')
    a('s_add_u32 s56, s51, s49')
    a(f's_mul_i32 s57, s48, {REG}')
    a('s_mov_b64 s[64:65], 1')
    a('s_waitcnt lgkmcnt(0)')
    srd(a, 32, 4, 4 << 20); srd(a, 36, 8, 4 << 20); srd(a, 44, 28, WS_SIZE)
    a('v_lshlrev_b32 v6, 4, v2')
    a('s_lshl_b32 s58, s56, 12')
    a('s_lshl_b32 s59, s56, 1'); a('v_mov_b32 v7, s59')
    a('global_load_ushort v8, v7, s[6:7]')
    a('s_cmp_eq_u32 s50, 0'); a('s_cbranch_scc0 K2_PB')
    for i in range(4):
        a(f's_add_u32 s59, s58, {WS_PA + i*1024}')
        a(f's_add_u32 m0, s57, {32 + i*1024}')
        a('buffer_load_dwordx4 v6, s[44:47], s59 offen lds')
    a(f's_add_u32 s60, s58, {WS_QU}')
    a('s_branch K2_PD')
    a('K2_PB:')
    for i in range(4):
        a(f's_add_u32 s59, s58, {i*1024}')
        a(f's_add_u32 m0, s57, {32 + i*1024}')
        a('buffer_load_dwordx4 v6, s[32:35], s59 offen lds')
    a(f's_add_u32 s60, s58, {WS_QKV}')
    a('K2_PD:')
    for ph in range(4):
        a(f's_add_u32 s59, s60, {ph*1024}')
        a(f's_add_u32 m0, s57, {QOFF + ph*1152 + 128}')
        a('buffer_load_dwordx4 v6, s[44:47], s59 offen lds')
    a('s_lshl_b32 s59, s48, 10')
    a(f's_add_u32 m0, s59, {L2_G}')
    a(f's_add_u32 s59, s59, {WS_G}')
    a('buffer_load_dwordx4 v6, s[44:47], s59 offen lds')
    for r in range(12, 16): a(f'v_mov_b32 v{r}, 0')
    a('v_lshrrev_b32 v9, 3, v2'); a('v_mul_u32_u24 v9, 1152, v9'); a('v_and_b32 v10, 7, v2')
    a('v_lshl_add_u32 v9, v10, 4, v9'); a(f'v_add_u32 v9, {QOFF}, v9')
    a('v_and_b32 v10, 1, v2'); a('v_lshlrev_b32 v10, 4, v10')
    a('v_cmp_gt_u32 vcc, 32, v2'); a('v_cndmask_b32 v9, v10, v9, vcc')
    a('v_add_u32 v9, s57, v9')
    q.issue('ds_write_b128 v9, v[12:15]')
    VA, VB, VIDX, VZERO, VT, VG, VX, VF, VO = 16, 17, 18, 19, 20, 21, 22, 23, 24
    a('v_lshrrev_b32 v10, 2, v4'); a('v_and_b32 v11, 3, v2')
    a('v_sub_u32 v11, v11, v10'); a('v_lshlrev_b32 v11, 3, v11')
    a('v_lshlrev_b32 v10, 6, v5'); a('v_sub_u32 v11, v11, v10')
    a('s_add_u32 s59, s57, 224'); a(f'v_add_u32 v{VA}, s59, v11')
    a('v_lshlrev_b32 v10, 3, v4'); a('v_lshl_add_u32 v10, v5, 4, v10')
    a(f's_add_u32 s59, s57, {QOFF + 8}'); a(f'v_add_u32 v{VB}, s59, v10')
    a('v_add_u32 v10, -1, v4'); a('v_and_b32 v10, 15, v10'); a('v_add_u32 v10, 48, v10')
    a('v_add_u32 v11, -16, v2'); a('v_cmp_gt_u32 vcc, 16, v2'); a('v_cndmask_b32 v10, v11, v10, vcc')
    a(f'v_lshlrev_b32 v{VIDX}, 2, v10')
    a(f'v_mov_b32 v{VZERO}, 0')
    a(f's_mul_i32 s59, s49, {TS}'); a(f's_mul_i32 s60, s50, {4*TS}'); a('s_add_u32 s59, s59, s60'); a(f's_add_u32 s59, s59, {L2_TA}')
    a('v_mul_u32_u24 v10, 40, v4'); a('v_lshl_add_u32 v10, v5, 3, v10'); a(f'v_add_u32 v{VT}, s59, v10')
    a('v_lshlrev_b32 v10, 6, v4'); a('v_lshl_add_u32 v10, v5, 4, v10'); a(f'v_add_u32 v{VG}, {L2_G}, v10')
    a(f's_mul_i32 s59, s49, {REG}'); a(f's_add_u32 s59, s59, {QOFF + 128}')
    a('v_lshlrev_b32 v10, 3, v4'); a('v_lshl_add_u32 v10, v5, 1, v10'); a(f'v_add_u32 v{VX}, s59, v10')
    a('v_lshrrev_b32 v10, 2, v4'); a(f'v_mul_u32_u24 v10, {TS}, v10'); a('v_and_b32 v11, 3, v2'); a('v_lshl_add_u32 v10, v11, 3, v10')
    a('v_mul_u32_u24 v11, 40, v5'); a('v_add_u32 v10, v10, v11')
    a('s_mul_i32 s59, s48, 160'); a(f's_add_u32 s59, s59, {L2_TA}'); a(f'v_add_u32 v{VF}, s59, v10')
    a('s_lshl_b32 s59, s48, 17'); a('s_lshl_b32 s60, s51, 1'); a('s_add_u32 s59, s59, s60')
    a(f'v_lshlrev_b32 v10, 11, v2'); a(f'v_add_u32 v{VO}, s59, v10')
    a('s_waitcnt vmcnt(0)')
    a('s_cmp_eq_u32 s50, 0'); a('s_cbranch_scc1 K2_NF')
    a('s_add_u32 s59, s57, 32'); a('v_mov_b32 v10, s59')
    a('ds_read_u16 v11, v10'); a('s_waitcnt lgkmcnt(0)')
    a('v_lshlrev_b32 v11, 16, v11'); a('v_lshlrev_b32 v8, 16, v8'); a('v_add_f32 v11, v11, v8')
    a('v_cvt_pk_bf16_f32 v11, v11, v11'); a('ds_write_b16 v10, v11')
    a('K2_NF:')
    q.waitall()
    a('s_barrier')
    AF, ACC, BR, NB, TMP = 64, 128, 160, 6, 184
    EP = 208
    lab = [0]
    def epilogue(gi, grp):
        lab[0] += 1; L = lab[0]
        q.waitall()
        n = len(grp)
        for j, c in enumerate(grp): a(f'ds_read_b128 v[{EP+4*j}:{EP+4*j+3}], v{VG} offset:{1024*c}')
        a('s_cmp_eq_u32 s50, 0'); a(f's_cbranch_scc0 K2_EB{L}')
        a('s_waitcnt lgkmcnt(0)')
        for j, c in enumerate(grp):
            for i in range(4): a(f'v_lshlrev_b32 v{EP+4*j+i}, 16, v{EP+4*j+i}')
            for i in range(4): a(f'v_mul_f32 v{EP+4*j+i}, v{EP+4*j+i}, v{ACC+4*c+i}')
            a(f'v_cvt_pk_bf16_f32 v{EP+4*j}, v{EP+4*j}, v{EP+4*j+1}'); a(f'v_cvt_pk_bf16_f32 v{EP+4*j+1}, v{EP+4*j+2}, v{EP+4*j+3}')
            a(f'ds_write_b64 v{VT}, v[{EP+4*j}:{EP+4*j+1}] offset:{640*c}')
        a(f's_branch K2_EJ{L}')
        a(f'K2_EB{L}:')
        XR = 26
        for j, c in enumerate(grp):
            for ph in range(4):
                a(f'ds_read_u16_d16_hi v{XR+4*j+ph}, v{VX} offset:{ph*1152+128*c}')
            if j % 2 == 1: a('s_waitcnt lgkmcnt(7)')
        a('s_waitcnt lgkmcnt(0)')
        for j, c in enumerate(grp):
            for i in range(4): a(f'v_and_b32 v{EP+4*j+i}, 0xffff0000, v{EP+4*j+i}')
            for i in range(4): a(f'v_mul_f32 v{EP+4*j+i}, v{EP+4*j+i}, v{ACC+4*c+i}')
            for i in range(4): a(f'v_and_b32 v{XR+4*j+i}, 0xffff0000, v{XR+4*j+i}')
            for i in range(4): a(f'v_mul_f32 v{EP+4*j+i}, v{EP+4*j+i}, v{XR+4*j+i}')
            a(f'v_cvt_pk_bf16_f32 v{EP+4*j}, v{EP+4*j}, v{EP+4*j+1}'); a(f'v_cvt_pk_bf16_f32 v{EP+4*j+1}, v{EP+4*j+2}, v{EP+4*j+3}')
            a(f'ds_write_b64 v{VT}, v[{EP+4*j}:{EP+4*j+1}] offset:{640*c}')
        a(f'K2_EJ{L}:')
        a('s_waitcnt lgkmcnt(0)')
        a('s_barrier')
        c0 = min(grp); npass = (256 * n) // 512
        F = 44
        for p in range(npass):
            off = 640 * c0 + 1280 * p
            a(f'ds_read_b64_tr_b16 v[{F+4*p}:{F+4*p+1}], v{VF} offset:{off}')
            a(f'ds_read_b64_tr_b16 v[{F+4*p+2}:{F+4*p+3}], v{VF} offset:{off + 4*TS}')
        a('s_waitcnt lgkmcnt(0)')
        for p in range(npass):
            A0, A1, B0, B1 = F+4*p, F+4*p+1, F+4*p+2, F+4*p+3
            t = 60 - 0
            a(f'v_lshlrev_b32 v26, 16, v{A0}'); a(f'v_and_b32 v27, 0xffff0000, v{A0}')
            a(f'v_lshlrev_b32 v28, 16, v{A1}'); a(f'v_and_b32 v29, 0xffff0000, v{A1}')
            a(f'v_lshlrev_b32 v30, 16, v{B0}'); a(f'v_and_b32 v31, 0xffff0000, v{B0}')
            a(f'v_lshlrev_b32 v32, 16, v{B1}'); a(f'v_and_b32 v33, 0xffff0000, v{B1}')
            for i in range(4): a(f'v_add_f32 v{26+i}, v{26+i}, v{30+i}')
            a(f'v_cvt_pk_bf16_f32 v{A0}, v26, v27'); a(f'v_cvt_pk_bf16_f32 v{A1}, v28, v29')
            a(f's_mov_b32 s59, {(256*c0 + 512*p) * 2048}')
            a(f'buffer_store_dwordx2 v[{A0}:{A1}], v{VO}, s[36:39], s59 offen')
        q.done = q.n
    gen_conv(a, q, groups, AF, ACC, BR, NB, TMP, VA, VB, VIDX, VZERO, epilogue)
    a('K2_END:')
    a('s_endpgm')
    return a, 256, K2_LDS

def kd(name, nv, ieee=0):
    return f""".p2align 6
.amdhsa_kernel {name}
  .amdhsa_next_free_vgpr {nv}
  .amdhsa_next_free_sgpr 80
  .amdhsa_accum_offset {((nv+3)//4)*4}
  .amdhsa_group_segment_fixed_size 0
  .amdhsa_kernarg_size 136
  .amdhsa_user_sgpr_count 2
  .amdhsa_user_sgpr_kernarg_segment_ptr 1
  .amdhsa_system_sgpr_workgroup_id_x 1
  .amdhsa_ieee_mode {ieee}
.end_amdhsa_kernel
"""

def build(path, groups):
    hdr = open('cdna_kernels/' + NAME + '.s.ref').read().split('\n')
    head = [l for l in hdr[:18] if l.startswith(';') and '@launch' not in l and 'Override' not in l and 'grid=ceil' not in l]
    k1, nv1, lds1 = gen_k1(); k2, nv2, lds2 = gen_k2(groups)
    out = head[:]
    out.append(f'; @launch kernel=k1_kernel grid=(256,1,1) block=(512,1,1) lds={lds1}')
    out.append(f'; @launch kernel=k2_kernel grid=(256,1,1) block=(512,1,1) lds={lds2}')
    out.append('.amdgcn_target "amdgcn-amd-amdhsa--gfx950"')
    out.append('.text')
    for nm, k in (('k1_kernel', k1), ('k2_kernel', k2)):
        out.append(f'.globl {nm}'); out.append('.p2align 8'); out.append(f'.type {nm},@function')
        lines, nn = k.finalize()
        print(nm, 'instrs', len(lines), 'nops inserted', nn)
        out += lines
    out.append('.section .rodata,"a"')
    out.append(kd('k1_kernel', nv1)); out.append(kd('k2_kernel', nv2))
    open(path, 'w').write('\n'.join(out) + '\n')

if __name__ == '__main__':
    import sys
    g = {'1': ((0,1,2,3,4,5,6,7),), '2': ((0,1,2,3),(4,5,6,7)), '3': ((0,1,2,3),(4,5),(6,7))}[sys.argv[2] if len(sys.argv) > 2 else '1']
    build(sys.argv[1], g)
```

```python
import sys
from asmlib import Asm

NAME = 'gated_mix__ssm_conv_s4d__ssm_conv_h3__prompt'
WS_QU, WS_QKV, WS_PA, WS_G = 0, 4 << 20, 8 << 20, 12 << 20
WS_SIZE = (12 << 20) + 8192
LOG2E = 0x3fb8aa3b
INV2PI = 0x3e22f983
USE_OMOD = True

def srd(a, d, ptr, size):
    a(f's_mov_b32 s{d}, s{ptr}')
    a(f's_and_b32 s{d+1}, s{ptr+1}, 0xffff')
    a(f's_mov_b32 s{d+2}, {size}')
    a(f's_mov_b32 s{d+3}, 0x20000')

STAMPS = False
STAMPOP = 's_memrealtime'
WS_DBG = 13 << 20
class Stamper:
    def __init__(self, a, kidx): self.a = a; self.n = 0; self.kidx = kidx
    def __call__(self):
        if not STAMPS: return
        self.a(f'{STAMPOP} s[{80+2*self.n}:{81+2*self.n}]'); self.n += 1
    def dump(self, wsptr):
        if not STAMPS: return
        a = self.a
        a('s_waitcnt lgkmcnt(0)')
        a(f's_lshl_b32 s66, s2, 3'); a('s_add_u32 s66, s66, s48'); a('s_lshl_b32 s66, s66, 7')
        a(f's_add_u32 s66, s66, {WS_DBG + self.kidx*(1<<18)}')
        a('v_mov_b32 v1, s66')
        a('s_mov_b64 exec, 1')
        for i in range(self.n):
            a(f'v_mov_b32 v2, s{80+2*i}'); a(f'v_mov_b32 v3, s{81+2*i}')
            a(f'global_store_dwordx2 v1, v[2:3], s[{wsptr}:{wsptr+1}] offset:{8*i}')
        a('s_mov_b64 exec, -1')

def sq(a, zr, zi, t):
    a(f'v_mul_f32 v{t}, v{zi}, v{zi}')
    if USE_OMOD:
        a(f'v_mul_f32_e64 v{zi}, v{zr}, v{zi} mul:2')
    else:
        a(f'v_mul_f32 v{zi}, v{zr}, v{zi}')
        a(f'v_add_f32 v{zi}, v{zi}, v{zi}')
    a(f'v_fma_f32 v{zr}, v{zr}, v{zr}, -v{t}')

K1_XT, K1_VT, K1_KT = 0, 16384, 32768
K1_PAR = 50176
K1_PART = K1_PAR + 8 * 1280
K1_PP = K1_PART + 16384
K1_LDS = K1_PP + 16384

def gen_kgen_main(a, PARB, acc, base):
    P = [base, base + 20]
    Z = base + 40
    T = base + 56
    Y = base + 64
    X = base + 80
    def rd(s):
        p = P[s & 1]
        for e in range(4):
            a(f'ds_read_b128 v[{p+4*e}:{p+4*e+3}], v{PARB} offset:{s*256+e*16}')
        a(f'ds_read_b128 v[{p+16}:{p+19}], v{PARB+1} offset:{s*64}')
    rd(0)
    for s in range(4):
        p = P[s & 1]
        if s < 3:
            rd(s + 1); a('s_waitcnt lgkmcnt(5)')
        else:
            a('s_waitcnt lgkmcnt(0)')
        zr = [Z + 4*e for e in range(4)]; zi = [Z + 4*e + 1 for e in range(4)]
        xr = [Z + 4*e + 2 for e in range(4)]; xn = [Z + 4*e + 3 for e in range(4)]
        t = [T + 2*e for e in range(4)]; t2 = [T + 2*e + 1 for e in range(4)]
        E = range(4)
        for e in E: a(f'v_mul_f32 v{t[e]}, v{p+4*e}, v3')
        for e in E: a(f'v_mul_f32 v{t2[e]}, v{p+4*e+1}, v3')
        for e in E: a(f'v_exp_f32 v{t[e]}, v{t[e]}')
        for e in E: a(f'v_fract_f32 v{t2[e]}, v{t2[e]}')
        for e in E: a(f'v_cos_f32 v{zr[e]}, v{t2[e]}')
        for e in E: a(f'v_sin_f32 v{zi[e]}, v{t2[e]}')
        for e in E: a(f'v_mul_f32 v{zr[e]}, v{zr[e]}, v{t[e]}')
        for e in E: a(f'v_mul_f32 v{zi[e]}, v{zi[e]}, v{t[e]}')
        def sqall():
            for e in E: a(f'v_mul_f32 v{t[e]}, v{zi[e]}, v{zi[e]}')
            if USE_OMOD:
                for e in E: a(f'v_mul_f32_e64 v{zi[e]}, v{zr[e]}, v{zi[e]} mul:2')
            else:
                for e in E: a(f'v_mul_f32 v{zi[e]}, v{zr[e]}, v{zi[e]}')
                for e in E: a(f'v_add_f32 v{zi[e]}, v{zi[e]}, v{zi[e]}')
            for e in E: a(f'v_fma_f32 v{zr[e]}, v{zr[e]}, v{zr[e]}, -v{t[e]}')
        for b in range(4):
            for e in E: a(f'v_cvt_pk_bf16_f32 v{Y+4*b+e}, v{zr[e]}, v{zi[e]}')
            sqall()
        for e in E: a(f'v_mul_f32 v{t[e]}, v{p+4*e+3}, v{zi[e]}')
        for e in E: a(f'v_mul_f32 v{t2[e]}, v{p+4*e+3}, v{zr[e]}')
        for e in E: a(f'v_fma_f32 v{xr[e]}, v{p+4*e+2}, v{zr[e]}, -v{t[e]}')
        for e in E: a(f'v_fma_f32 v{xn[e]}, -v{p+4*e+2}, v{zi[e]}, -v{t2[e]}')
        for e in E: a(f'v_cvt_pk_bf16_f32 v{X+e}, v{xr[e]}, v{xn[e]}')
        for b in range(1, 4):
            for e in E: a(f'v_mul_f32 v{t[e]}, v{xn[e]}, v{zi[e]}')
            for e in E: a(f'v_mul_f32 v{t2[e]}, v{xn[e]}, v{zr[e]}')
            for e in E: a(f'v_fma_f32 v{xn[e]}, -v{xr[e]}, v{zi[e]}, v{t2[e]}')
            for e in E: a(f'v_fma_f32 v{xr[e]}, v{xr[e]}, v{zr[e]}, v{t[e]}')
            for e in E: a(f'v_cvt_pk_bf16_f32 v{X+4*b+e}, v{xr[e]}, v{xn[e]}')
            if b < 3: sqall()
        for e in E: a(f'v_cndmask_b32 v{X+12+e}, v{X+12+e}, v{p+16+e}, s[52:53]')
        for b in range(4):
            c = f'v[{acc+4*b}:{acc+4*b+3}]' if s > 0 else '0'
            a(f'v_mfma_f32_16x16x32_bf16 v[{acc+4*b}:{acc+4*b+3}], v[{Y+4*b}:{Y+4*b+3}], v[{X+4*b}:{X+4*b+3}], {c}')

def gen_expand(a, acc, paddr, tmp):
    A0, A01, A1, A2, A23, A3, A12, AD = [tmp + i for i in range(8)]
    def cv(b):
        k = acc + 4 * b
        a(f'v_cvt_pk_bf16_f32 v{A0}, v{k}, v{k}')
        a(f'v_cvt_pk_bf16_f32 v{A01}, v{k}, v{k+1}')
        a(f'v_cvt_pk_bf16_f32 v{A1}, v{k+1}, v{k+1}')
        a(f'v_cvt_pk_bf16_f32 v{A2}, v{k+2}, v{k+2}')
        a(f'v_cvt_pk_bf16_f32 v{A23}, v{k+2}, v{k+3}')
        a(f'v_cvt_pk_bf16_f32 v{A3}, v{k+3}, v{k+3}')
        a(f'v_cvt_pk_bf16_f32 v{A12}, v{k+1}, v{k+2}')
    M = tmp + 8
    a(f'v_lshlrev_b32 v{M}, 4, v4')
    a(f'v_lshl_add_u32 v{M}, v5, 2, v{M}')
    cv(3)
    a('s_mov_b64 exec, 1')
    a(f'v_add_u32 v{tmp+9}, 4088, v{paddr}')
    a(f'ds_write2_b32 v{tmp+9}, v{A0}, v{A0} offset0:0 offset1:1')
    a('s_mov_b64 exec, s[54:55]')
    a(f'v_lshlrev_b32 v{AD}, 4, v{M}')
    a(f'v_add3_u32 v{AD}, v{AD}, v{paddr}, -8')
    seq = [A0,A0,A0,A0,A01,A1,A1,A1,A2,A2,A2,A2,A23,A3,A3,A3]
    for i in range(8):
        a(f'ds_write2_b32 v{AD}, v{seq[2*i]}, v{seq[2*i+1]} offset0:{2*i} offset1:{2*i+1}')
    cv(2)
    a(f'v_lshlrev_b32 v{AD}, 3, v{M}')
    a(f'v_add3_u32 v{AD}, v{AD}, v{paddr}, -4')
    seq = [A0,A0,A01,A1,A2,A2,A23,A3]
    for i in range(4):
        a(f'ds_write2_b32 v{AD}, v{seq[2*i]}, v{seq[2*i+1]} offset0:{2*i} offset1:{2*i+1}')
    cv(1)
    a(f'v_lshlrev_b32 v{AD}, 2, v{M}')
    a(f'v_add3_u32 v{AD}, v{AD}, v{paddr}, -4')
    a(f'ds_write_b16 v{AD}, v{A0} offset:2')
    a(f'ds_write2_b32 v{AD}, v{A0}, v{A12} offset0:1 offset1:2')
    a(f'ds_write_b32 v{AD}, v{A2} offset:12')
    a(f'ds_write_b16 v{AD}, v{A3} offset:16')
    a('s_mov_b64 exec, -1')
    cv(0)
    a(f'v_lshlrev_b32 v{AD}, 1, v{M}')
    a(f'v_add_u32 v{AD}, v{AD}, v{paddr}')
    a(f'ds_write2_b32 v{AD}, v{A01}, v{A23} offset0:0 offset1:1')

def gen_k1():
    a = Asm()
    a('k1_kernel:')
    a('s_cmp_ge_u32 s2, 256')
    a('s_cbranch_scc1 K1_END')
    st = Stamper(a, 0); st()
    a('s_load_dwordx4 s[4:7], s[0:1], 0')
    a('s_load_dwordx4 s[8:11], s[0:1], 16')
    a('s_load_dwordx4 s[12:15], s[0:1], 32')
    a('s_load_dwordx2 s[16:17], s[0:1], 48')
    a('s_load_dwordx4 s[20:23], s[0:1], 64')
    a('s_load_dwordx2 s[24:25], s[0:1], 80')
    a('s_load_dwordx2 s[26:27], s[0:1], 104')
    a('s_load_dwordx2 s[28:29], s[0:1], 128')
    a('v_lshrrev_b32 v1, 6, v0')
    a('v_and_b32 v2, 63, v0')
    a('v_readfirstlane_b32 s48, v1')
    a('v_and_b32 v4, 15, v2')
    a('v_lshrrev_b32 v5, 4, v2')
    a('v_cvt_f32_u32 v3, v4')
    a('s_and_b32 s49, s48, 3')
    a('s_lshr_b32 s50, s48, 2')
    a('s_and_b32 s51, s2, 15')
    a('s_lshr_b32 s56, s2, 4')
    a('s_mov_b32 s52, 0x00010001'); a('s_mov_b32 s53, 0x00010001')
    a('s_mov_b32 s54, 0xff00ff00'); a('s_mov_b32 s55, 0xff00ff00')
    a('s_waitcnt lgkmcnt(0)')
    srd(a, 32, 4, 4 << 20); srd(a, 36, 20, 4 << 20); srd(a, 40, 22, 4 << 20); srd(a, 44, 28, WS_SIZE)
    a('s_lshl_b32 s57, s2, 10'); a('s_lshl_b32 s58, s49, 8'); a('s_add_u32 s57, s57, s58')
    a('s_lshl_b32 s58, s50, 7'); a('s_add_u32 s57, s57, s58')
    a('v_lshl_add_u32 v6, v2, 1, s57')
    a('global_load_ushort v10, v6, s[6:7]')
    a('global_load_ushort v11, v6, s[8:9]')
    a('global_load_ushort v12, v6, s[10:11]')
    a('global_load_ushort v13, v6, s[12:13]')
    a('s_lshl_b32 s57, s2, 3'); a('s_lshl_b32 s58, s49, 1'); a('s_add_u32 s57, s57, s58')
    a('v_mov_b32 v7, s57')
    a('global_load_ushort v14, v7, s[14:15]')
    a('global_load_ushort v15, v7, s[16:17]')
    a('s_lshl_b32 s57, s2, 3'); a('s_add_u32 s59, s57, s48')
    a('s_lshl_b32 s57, s59, 11')
    a('v_lshlrev_b32 v8, 5, v2')
    a('v_add_u32 v9, s57, v8')
    a('global_load_dwordx4 v[16:19], v9, s[4:5]')
    a('global_load_dwordx4 v[20:23], v9, s[4:5] offset:16')
    a('global_load_dwordx4 v[24:27], v8, s[26:27]')
    a('global_load_dwordx4 v[28:31], v8, s[26:27] offset:16')
    a('s_lshl_b32 s57, s51, 9'); a('s_lshl_b32 s58, s49, 7'); a('s_add_u32 s57, s57, s58')
    a('v_lshl_add_u32 v9, v4, 3, s57')
    a('global_load_dwordx2 v[32:33], v9, s[24:25]')
    a('v_lshrrev_b32 v34, 3, v2')
    a('v_and_b32 v35, 7, v2')
    a('v_and_b32 v36, 1, v5'); a('v_lshlrev_b32 v36, 1, v36')
    a('s_lshr_b32 s57, s48, 1'); a('s_and_b32 s57, s57, 1'); a('s_lshl_b32 s57, s57, 2')
    a('v_or_b32 v37, s57, v36')
    a('v_xor_b32 v37, v37, v35')
    a('v_lshlrev_b32 v37, 4, v37')
    a('v_lshl_add_u32 v37, v34, 11, v37')
    a('s_lshl_b32 s57, s56, 18'); a('s_lshl_b32 s58, s48, 15'); a('s_add_u32 s57, s57, s58')
    a('s_lshl_b32 s58, s51, 7'); a('s_add_u32 s60, s57, s58')
    a('s_lshl_b32 s61, s48, 11')
    a('v_lshrrev_b32 v38, 5, v2'); a('v_lshlrev_b32 v38, 1, v38')
    for h in range(2):
        a(f'v_or_b32 v39, {4*h}, v38'); a('v_xor_b32 v39, v39, v35'); a('v_lshlrev_b32 v39, 4, v39')
        a(f'v_lshl_add_u32 v{40+h}, v34, 11, v39')
    for h in range(2):
        a(f's_add_u32 s57, s60, {h*8*2048}')
        a(f's_add_u32 m0, s61, {K1_XT + h*1024}')
        a(f'buffer_load_dwordx4 v{40+h}, s[32:35], s57 offen lds')
        a(f's_add_u32 m0, s61, {K1_VT + h*1024}')
        a(f'buffer_load_dwordx4 v37, s[40:43], s57 offen lds')
    for h in range(2):
        a(f's_add_u32 s57, s60, {h*8*2048}')
        a(f's_sub_u32 s57, s57, {4*2048}')
        a(f'v_add_u32 v42, s57, v37')
        a(f's_add_u32 m0, s61, {K1_KT + h*1024}')
        a(f'buffer_load_dwordx4 v42, s[36:39], 0 offen lds')
    a('s_cmp_lg_u32 s48, 7'); a('s_cbranch_scc1 K1_NOX')
    a('v_xor_b32 v42, v36, v35'); a('v_lshlrev_b32 v42, 4, v42'); a('v_lshl_add_u32 v42, v34, 11, v42')
    a('s_lshl_b32 s57, s56, 18'); a(f's_add_u32 s57, s57, {124*2048}'); a('s_lshl_b32 s58, s51, 7'); a('s_add_u32 s57, s57, s58')
    a('v_add_u32 v42, s57, v42')
    a(f's_mov_b32 m0, {K1_KT + 128*128}')
    a('s_nop 0')
    a('buffer_load_dwordx4 v42, s[36:39], 0 offen lds')
    a('K1_NOX:')
    st()
    a('s_waitcnt vmcnt(11)')
    a(f's_mov_b32 s62, {LOG2E}'); a(f's_mov_b32 s63, {INV2PI}')
    for r in (10, 11, 12, 13, 14, 15): a(f'v_lshlrev_b32 v{r}, 16, v{r}')
    a('v_mul_f32 v14, s62, v14'); a('v_mul_f32 v10, s62, v10')
    a('v_exp_f32 v14, v14'); a('v_exp_f32 v10, v10')
    a('v_cvt_pk_bf16_f32 v14, v14, v14'); a('v_cvt_pk_bf16_f32 v10, v10, v10')
    a('v_lshlrev_b32 v14, 16, v14'); a('v_lshlrev_b32 v10, 16, v10')
    a('v_mul_f32 v44, v10, v14'); a('v_mul_f32 v45, v11, v14')
    a('v_mul_f32 v44, s62, v44'); a('v_sub_f32 v44, 0, v44')
    a('v_mul_f32 v45, s63, v45')
    a('v_add_f32 v14, v14, v14')
    a('v_mul_f32 v46, v12, v14'); a('v_mul_f32 v47, v13, v14')
    a(f's_mul_i32 s57, s48, 1280'); a(f's_add_u32 s57, s57, {K1_PAR}')
    a('v_lshl_add_u32 v48, v2, 4, s57')
    a('ds_write_b128 v48, v[44:47]')
    a('s_mov_b32 s58, 0x45000000')
    a('v_mul_f32 v50, s58, v44'); a('v_mul_f32 v51, s58, v45')
    a('v_exp_f32 v50, v50'); a('v_fract_f32 v51, v51')
    a('v_cos_f32 v52, v51'); a('v_sin_f32 v53, v51')
    a('v_mul_f32 v52, v52, v50'); a('v_mul_f32 v53, v53, v50')
    a('v_mul_f32 v54, v47, v53'); a('v_mul_f32 v55, v47, v52')
    a('v_fma_f32 v54, v46, v52, -v54'); a('v_fma_f32 v55, -v46, v53, -v55')
    a('v_cvt_pk_bf16_f32 v54, v54, v55')
    a('s_add_u32 s57, s57, 1024')
    a('v_lshl_add_u32 v49, v2, 2, s57')
    a('ds_write_b32 v49, v54')
    a('s_sub_u32 s58, s57, 1024')
    a('v_lshl_add_u32 v56, v5, 6, s58')
    a('v_lshl_add_u32 v57, v5, 4, s57')
    a('s_waitcnt vmcnt(7)')
    a('v_mov_b32 v58, 0'); a('v_mov_b32 v59, 0')
    for i in range(4):
        a(f'v_dot2c_f32_bf16 v58, v{16+i}, v{24+i}')
        a(f'v_dot2c_f32_bf16 v59, v{20+i}, v{28+i}')
    a('s_nop 3')
    a('v_add_f32 v58, v58, v59')
    for sh in (1, 2, 4, 8):
        a(f'v_add_f32_dpp v58, v58, v58 row_shr:{sh} row_mask:0xf bank_mask:0xf bound_ctrl:0')
    a('v_add_f32_dpp v58, v58, v58 row_bcast:15 row_mask:0xa bank_mask:0xf')
    a('v_add_f32_dpp v58, v58, v58 row_bcast:31 row_mask:0xc bank_mask:0xf')
    a('v_readlane_b32 s57, v58, 63')
    a('v_mov_b32 v58, s57')
    a('v_cvt_pk_bf16_f32 v58, v58, v58'); a('v_lshlrev_b32 v58, 16, v58')
    a('v_mul_f32 v58, s62, v58'); a('v_sub_f32 v58, 0, v58')
    a('v_exp_f32 v58, v58'); a('v_add_f32 v58, 1.0, v58'); a('v_rcp_f32 v58, v58')
    a('v_cvt_pk_bf16_f32 v58, v58, v58'); a('v_lshlrev_b32 v58, 16, v58')
    a('v_sub_f32 v59, 1.0, v58'); a('v_cvt_pk_bf16_f32 v58, v58, v59')
    a('s_lshl_b32 s57, s59, 2'); a(f's_add_u32 s57, s57, {WS_G}')
    a('v_mov_b32 v59, 0')
    a('s_mov_b64 exec, 1')
    a('buffer_store_dword v58, v59, s[44:47], s57 offen')
    a('s_mov_b64 exec, -1')
    ACC = 64
    a('s_waitcnt lgkmcnt(0)')
    st()
    gen_kgen_main(a, 56, ACC, 80)
    st()
    a(f's_lshl_b32 s57, s49, 12'); a(f's_add_u32 s57, s57, {K1_PART}')
    a('v_lshl_add_u32 v60, v2, 4, s57')
    a('s_cmp_eq_u32 s50, 0'); a('s_cbranch_scc1 K1_H0')
    for b in range(4): a(f'ds_write_b128 v60, v[{ACC+4*b}:{ACC+4*b+3}] offset:{b*1024}')
    a('K1_H0:')
    a('s_waitcnt vmcnt(0) lgkmcnt(0)')
    a('s_barrier')
    st()
    a('s_cmp_eq_u32 s50, 0'); a('s_cbranch_scc0 K1_KV')
    for b in range(4): a(f'ds_read_b128 v[{80+4*b}:{80+4*b+3}], v60 offset:{b*1024}')
    a('v_lshrrev_b32 v61, 2, v4')
    a('v_and_b32 v62, 3, v2')
    a('v_lshrrev_b32 v63, 1, v62')
    a('s_lshl_b32 s57, s49, 1'); a('v_add_u32 v63, s57, v63')
    a('v_lshlrev_b32 v100, 1, v61'); a('v_xor_b32 v63, v63, v100'); a('v_lshlrev_b32 v63, 4, v63')
    a('v_and_b32 v100, 1, v62'); a('v_lshl_add_u32 v63, v100, 3, v63')
    a('v_lshl_add_u32 v63, v61, 9, v63'); a('v_lshl_add_u32 v63, v5, 12, v63')
    for ph in range(4):
        for h in range(2):
            a(f'ds_read_b64_tr_b16 v[{104+4*ph+2*h}:{104+4*ph+2*h+1}], v63 offset:{K1_XT + (16*h+ph)*128}')
    a('s_waitcnt lgkmcnt(8)')
    for i in range(16): a(f'v_add_f32 v{ACC+i}, v{ACC+i}, v{80+i}')
    a('v_mov_b32 v100, 0'); a('s_mov_b64 s[64:65], 1')
    a('v_cndmask_b32 v100, v100, v15, s[64:65]'); a(f'v_add_f32 v{ACC}, v{ACC}, v100')
    a(f's_lshl_b32 s57, s49, 12'); a(f's_add_u32 s57, s57, {K1_PP}')
    a('v_mov_b32 v101, s57')
    gen_expand(a, ACC, 101, 120)
    a('s_lshl_b32 s57, s51, 18'); a('s_lshl_b32 s58, s49, 16'); a('s_add_u32 s57, s57, s58')
    a('s_lshl_b32 s58, s56, 6'); a('s_add_u32 s57, s57, s58')
    a('v_lshlrev_b32 v102, 12, v4'); a('v_lshl_add_u32 v102, v5, 4, v102'); a('v_add_u32 v102, s57, v102')
    a('s_waitcnt lgkmcnt(0)')
    for ph in range(4):
        a(f's_mov_b32 s58, {WS_QU + ph*1024}')
        a(f'buffer_store_dwordx4 v[{104+4*ph}:{104+4*ph+3}], v102, s[44:47], s58 offen')
    a('v_lshl_add_u32 v103, v2, 4, v101')
    for i in range(4): a(f'ds_read_b128 v[{80+4*i}:{80+4*i+3}], v103 offset:{i*1024}')
    a('s_lshl_b32 s57, s2, 14'); a('s_lshl_b32 s58, s49, 12'); a('s_add_u32 s57, s57, s58')
    a('v_lshl_add_u32 v103, v2, 4, s57')
    a('s_waitcnt lgkmcnt(0)')
    for i in range(4):
        a(f's_mov_b32 s58, {WS_PA + i*1024}')
        a(f'buffer_store_dwordx4 v[{80+4*i}:{80+4*i+3}], v103, s[44:47], s58 offen')
    a('s_branch K1_FIN')
    a('K1_KV:')
    a('v_lshrrev_b32 v61, 2, v4')
    a('v_and_b32 v62, 3, v2')
    a('v_lshrrev_b32 v63, 1, v62')
    a('s_lshl_b32 s57, s49, 1'); a('v_add_u32 v63, s57, v63')
    a('v_lshrrev_b32 v100, 1, v61'); a('v_lshlrev_b32 v100, 1, v100')
    a('v_and_b32 v101, 1, v5'); a('v_lshl_or_b32 v100, v101, 2, v100')
    a('v_xor_b32 v101, v63, v100')
    a('v_xor_b32 v102, 4, v101')
    a('v_and_b32 v100, 1, v62'); a('v_lshlrev_b32 v100, 3, v100')
    a('v_lshl_add_u32 v100, v61, 7, v100'); a('v_lshl_add_u32 v100, v5, 12, v100')
    a('v_lshl_add_u32 v101, v101, 4, v100'); a('v_lshl_add_u32 v102, v102, 4, v100')
    KD, VD, KF, KV = 64, 84, 104, 140
    for h in range(8): a(f'ds_read_b64_tr_b16 v[{KD+2*h}:{KD+2*h+1}], v101 offset:{K1_KT + 512*h}')
    a(f'ds_read_b64_tr_b16 v[{KD+16}:{KD+17}], v102 offset:{K1_KT + 512*8}')
    for h in range(8): a(f'ds_read_b64_tr_b16 v[{VD+2*h}:{VD+2*h+1}], v101 offset:{K1_VT + 512*h}')
    a('v_lshlrev_b32 v56, 16, v32'); a('v_and_b32 v57, 0xffff0000, v32')
    a('v_lshlrev_b32 v58, 16, v33'); a('v_and_b32 v59, 0xffff0000, v33')
    a('s_waitcnt lgkmcnt(8)')
    for d in range(18):
        a(f'v_lshlrev_b32 v{KF+2*d}, 16, v{KD+d}'); a(f'v_and_b32 v{KF+2*d+1}, 0xffff0000, v{KD+d}')
    for t in range(32): a(f'v_mul_f32 v{KV+t}, v56, v{KF+t+4}')
    for t in range(32): a(f'v_fmac_f32 v{KV+t}, v57, v{KF+t+3}')
    for t in range(32): a(f'v_fmac_f32 v{KV+t}, v58, v{KF+t+2}')
    for t in range(32): a(f'v_fmac_f32 v{KV+t}, v59, v{KF+t+1}')
    a('s_waitcnt lgkmcnt(0)')
    for d in range(16):
        a(f'v_lshlrev_b32 v{KF+2*d}, 16, v{VD+d}'); a(f'v_and_b32 v{KF+2*d+1}, 0xffff0000, v{VD+d}')
    for t in range(32): a(f'v_mul_f32 v{KV+t}, v{KV+t}, v{KF+t}')
    for ph in range(4):
        for jj in range(4):
            a(f'v_cvt_pk_bf16_f32 v{64+4*ph+jj}, v{KV+ph+8*jj}, v{KV+ph+8*jj+4}')
    a('s_lshl_b32 s57, s51, 18'); a('s_lshl_b32 s58, s49, 16'); a('s_add_u32 s57, s57, s58')
    a('s_lshl_b32 s58, s56, 6'); a('s_add_u32 s57, s57, s58')
    a('v_lshlrev_b32 v102, 12, v4'); a('v_lshl_add_u32 v102, v5, 4, v102'); a('v_add_u32 v102, s57, v102')
    for ph in range(4):
        a(f's_mov_b32 s58, {WS_QKV + ph*1024}')
        a(f'buffer_store_dwordx4 v[{64+4*ph}:{64+4*ph+3}], v102, s[44:47], s58 offen')
    a('K1_FIN:')
    if STAMPS:
        a('s_waitcnt vmcnt(0)')
    st(); st.dump(28)
    a('K1_END:')
    a('s_endpgm')
    return a, 176, K1_LDS
```

```python
from asmlib import Asm
import gen1
from gen1 import *

REG = 8736
QOFF = 4128
L2_G = 8 * REG
L2_TA = L2_G + 8192
TS = 5184
L2_TB = L2_TA + 4 * TS
K2_LDS = L2_TB + 4 * TS

class DSQ:
    def __init__(self, a): self.a = a; self.n = 0; self.done = 0
    def issue(self, text):
        self.a(text); self.n += 1; return self.n
    def wait(self, tag):
        if tag <= self.done: return
        k = min(self.n - tag, 15)
        self.a(f's_waitcnt lgkmcnt({k})')
        self.done = self.n - k
    def waitall(self):
        self.a('s_waitcnt lgkmcnt(0)'); self.done = self.n

def gen_conv(a, q, groups, AF, ACC, BR, NB, TMP, VA, VB, VIDX, VZERO, epilogue):
    atag = {}
    items = []
    for gi, grp in enumerate(groups):
        for ph in (3, 2, 1, 0):
            for mu in range(-1, 2 * max(grp) + 1):
                items.append((gi, ph, mu, [c for c in grp if mu <= 2 * c]))
    btag = {}
    def loadB(i):
        if i >= len(items): return
        gi, ph, mu, _ = items[i]
        s = BR + 4 * (i % NB)
        off = ph * 1152 + 64 * (mu + 1)
        q.issue(f'ds_read_b64 v[{s}:{s+1}], v{VB} offset:{off}')
        btag[i] = q.issue(f'ds_read_b64 v[{s+2}:{s+3}], v{VB} offset:{off+8}')
    def loadA(m):
        r = AF + 4 * m
        q.issue(f'ds_read_b64_tr_b16 v[{r}:{r+1}], v{VA} offset:{256*m+32}')
        atag[m] = q.issue(f'ds_read_b64_tr_b16 v[{r+2}:{r+3}], v{VA} offset:{256*m}')
    aorder = []
    for gi, ph, mu, cs in items:
        for c in cs:
            m = 2 * c - mu
            if m not in aorder: aorder.append(m)
    apend = list(aorder)
    nbl = 0
    def tmpreg(c, ph):
        for gi, grp in enumerate(groups):
            if c == max(grp) and gi < len(groups) - 1: return TMP + 8 + 3 * gi + (ph - 1)
        return TMP + c
    pend = []
    nm = [0]
    def shift_bperm(e):
        c, ph = e['c'], e['ph']
        e['tag'] = q.issue(f'ds_bpermute_b32 v{tmpreg(c,ph)}, v{VIDX}, v{ACC+4*c+3}')
        e['stage'] = 1; e['since'] = nm[0]
    def shift_fin(e):
        c, ph = e['c'], e['ph']
        q.wait(e['tag'])
        r = ACC + 4 * c
        prev = f'v{tmpreg(c-1,ph)}' if c > 0 else f'v{VZERO}'
        a(f'v_mov_b32 v{r+3}, v{r+2}'); a(f'v_mov_b32 v{r+2}, v{r+1}'); a(f'v_mov_b32 v{r+1}, v{r}')
        a(f'v_cndmask_b32 v{r}, v{tmpreg(c,ph)}, {prev}, s[64:65]')
        e['stage'] = 2
    def progress(force_c=None):
        for e in list(pend):
            if e['stage'] == 0 and (nm[0] - e['since'] >= 5 or force_c is not None):
                shift_bperm(e)
            elif e['stage'] == 1 and (nm[0] - e['since'] >= 6 or force_c is not None):
                shift_fin(e); pend.remove(e)
            if force_c is not None and e['c'] == force_c and e in pend:
                if e['stage'] == 0: shift_bperm(e)
                shift_fin(e); pend.remove(e)
            if e in pend and force_c is None: break
            if force_c is not None and e['c'] == force_c: break
    for i in range(min(2, NB)): loadB(i)
    nbl = min(2, NB)
    started = set()
    for i, (gi, ph, mu, cs) in enumerate(items):
        while nbl < min(i + NB, len(items)) and (q.n - q.done) <= 11 and not apend:
            loadB(nbl); nbl += 1
        if nbl <= i: loadB(nbl); nbl += 1
        for c in cs:
            m = 2 * c - mu
            while m not in atag:
                if q.n - q.done > 12: q.wait(q.n - 8)
                loadA(apend.pop(0))
            k = 0
            while apend and (q.n - q.done) <= 11 and k < 2:
                loadA(apend.pop(0)); k += 1
            if any(e['c'] == c for e in pend): progress(force_c=c)
            q.wait(btag[i]); q.wait(atag[m])
            s = BR + 4 * (i % NB)
            first = (ph == 3 and mu == -1)
            cin = '0' if first else f'v[{ACC+4*c}:{ACC+4*c+3}]'
            a(f'v_mfma_f32_16x16x32_bf16 v[{ACC+4*c}:{ACC+4*c+3}], v[{AF+4*m}:{AF+4*m+3}], v[{s}:{s+3}], {cin}')
            nm[0] += 1
            if mu == 2 * c and ph > 0:
                pend.append(dict(c=c, ph=ph, stage=0, since=nm[0], tag=None))
            progress()
            if nbl < min(i + NB, len(items)) and (q.n - q.done) <= 11 and not apend:
                loadB(nbl); nbl += 1
        last_of_group = (i + 1 == len(items)) or items[i + 1][0] != gi
        if last_of_group:
            assert not pend
            epilogue(gi, groups[gi])

def gen_k2(groups=((0,1,2,3,4,5,6,7),)):
    a = Asm(); q = DSQ(a)
    a('k2_kernel:')
    a('s_cmp_ge_u32 s2, 256')
    a('s_cbranch_scc1 K2_END')
    st = Stamper(a, 1); st()
    a('s_load_dwordx4 s[4:7], s[0:1], 88')
    a('s_load_dwordx2 s[8:9], s[0:1], 112')
    a('s_load_dwordx2 s[28:29], s[0:1], 128')
    a('v_lshrrev_b32 v1, 6, v0')
    a('v_and_b32 v2, 63, v0')
    a('v_readfirstlane_b32 s48, v1')
    a('v_and_b32 v4, 15, v2')
    a('v_lshrrev_b32 v5, 4, v2')
    a('s_and_b32 s49, s48, 3')
    a('s_lshr_b32 s50, s48, 2')
    a('s_and_b32 s51, s2, 7'); a('s_lshl_b32 s51, s51, 5'); a('s_lshr_b32 s56, s2, 3'); a('s_add_u32 s51, s51, s56')
    a('s_lshl_b32 s51, s51, 2')
    a('s_add_u32 s56, s51, s49')
    a(f's_mul_i32 s57, s48, {REG}')
    a('s_mov_b64 s[64:65], 1')
    a('s_waitcnt lgkmcnt(0)')
    srd(a, 32, 4, 4 << 20); srd(a, 36, 8, 4 << 20); srd(a, 44, 28, WS_SIZE)
    a('v_lshlrev_b32 v6, 4, v2')
    a('s_lshl_b32 s58, s56, 12')
    a('s_lshl_b32 s59, s56, 1'); a('v_mov_b32 v7, s59')
    a('global_load_ushort v8, v7, s[6:7]')
    a('s_cmp_eq_u32 s50, 0'); a('s_cbranch_scc0 K2_PB')
    for i in range(4):
        a(f's_add_u32 s59, s58, {WS_PA + i*1024}')
        a(f's_add_u32 m0, s57, {32 + i*1024}')
        a('buffer_load_dwordx4 v6, s[44:47], s59 offen lds')
    a(f's_add_u32 s60, s58, {WS_QU}')
    a('s_branch K2_PD')
    a('K2_PB:')
    for i in range(4):
        a(f's_add_u32 s59, s58, {i*1024}')
        a(f's_add_u32 m0, s57, {32 + i*1024}')
        a('buffer_load_dwordx4 v6, s[32:35], s59 offen lds')
    a(f's_add_u32 s60, s58, {WS_QKV}')
    a('K2_PD:')
    for ph in range(4):
        a(f's_add_u32 s59, s60, {ph*1024}')
        a(f's_add_u32 m0, s57, {QOFF + ph*1152 + 128}')
        a('buffer_load_dwordx4 v6, s[44:47], s59 offen lds')
    a('s_lshl_b32 s59, s48, 10')
    a(f's_add_u32 m0, s59, {L2_G}')
    a(f's_add_u32 s59, s59, {WS_G}')
    a('buffer_load_dwordx4 v6, s[44:47], s59 offen lds')
    for r in range(12, 16): a(f'v_mov_b32 v{r}, 0')
    a('v_lshrrev_b32 v9, 3, v2'); a('v_mul_u32_u24 v9, 1152, v9'); a('v_and_b32 v10, 7, v2')
    a('v_lshl_add_u32 v9, v10, 4, v9'); a(f'v_add_u32 v9, {QOFF}, v9')
    a('v_and_b32 v10, 1, v2'); a('v_lshlrev_b32 v10, 4, v10')
    a('v_cmp_gt_u32 vcc, 32, v2'); a('v_cndmask_b32 v9, v10, v9, vcc')
    a('v_add_u32 v9, s57, v9')
    q.issue('ds_write_b128 v9, v[12:15]')
    VA, VB, VIDX, VZERO, VT, VG, VX, VF, VO = 16, 17, 18, 19, 20, 21, 22, 23, 24
    a('v_lshrrev_b32 v10, 2, v4'); a('v_and_b32 v11, 3, v2')
    a('v_sub_u32 v11, v11, v10'); a('v_lshlrev_b32 v11, 3, v11')
    a('v_lshlrev_b32 v10, 6, v5'); a('v_sub_u32 v11, v11, v10')
    a('s_add_u32 s59, s57, 224'); a(f'v_add_u32 v{VA}, s59, v11')
    a('v_lshlrev_b32 v10, 3, v4'); a('v_lshl_add_u32 v10, v5, 4, v10')
    a(f's_add_u32 s59, s57, {QOFF + 8}'); a(f'v_add_u32 v{VB}, s59, v10')
    a('v_add_u32 v10, -1, v4'); a('v_and_b32 v10, 15, v10'); a('v_add_u32 v10, 48, v10')
    a('v_add_u32 v11, -16, v2'); a('v_cmp_gt_u32 vcc, 16, v2'); a('v_cndmask_b32 v10, v11, v10, vcc')
    a(f'v_lshlrev_b32 v{VIDX}, 2, v10')
    a(f'v_mov_b32 v{VZERO}, 0')
    a(f's_mul_i32 s59, s49, {TS}'); a(f's_mul_i32 s60, s50, {4*TS}'); a('s_add_u32 s59, s59, s60'); a(f's_add_u32 s59, s59, {L2_TA}')
    a('v_mul_u32_u24 v10, 40, v4'); a('v_lshl_add_u32 v10, v5, 3, v10'); a(f'v_add_u32 v{VT}, s59, v10')
    a('v_lshlrev_b32 v10, 6, v4'); a('v_lshl_add_u32 v10, v5, 4, v10'); a(f'v_add_u32 v{VG}, {L2_G}, v10')
    a(f's_mul_i32 s59, s49, {REG}'); a(f's_add_u32 s59, s59, {QOFF + 128}')
    a('v_lshlrev_b32 v10, 3, v4'); a('v_lshl_add_u32 v10, v5, 1, v10'); a(f'v_add_u32 v{VX}, s59, v10')
    a('v_lshrrev_b32 v10, 2, v4'); a(f'v_mul_u32_u24 v10, {TS}, v10'); a('v_and_b32 v11, 3, v2'); a('v_lshl_add_u32 v10, v11, 3, v10')
    a('v_mul_u32_u24 v11, 40, v5'); a('v_add_u32 v10, v10, v11')
    a('s_mul_i32 s59, s48, 160'); a(f's_add_u32 s59, s59, {L2_TA}'); a(f'v_add_u32 v{VF}, s59, v10')
    a('s_lshl_b32 s59, s48, 17'); a('s_lshl_b32 s60, s51, 1'); a('s_add_u32 s59, s59, s60')
    a(f'v_lshlrev_b32 v10, 11, v2'); a(f'v_add_u32 v{VO}, s59, v10')
    st()
    a('s_waitcnt vmcnt(0)')
    st()
    a('s_cmp_eq_u32 s50, 0'); a('s_cbranch_scc1 K2_NF')
    a('s_add_u32 s59, s57, 32'); a('v_mov_b32 v10, s59')
    a('ds_read_u16 v11, v10'); a('s_waitcnt lgkmcnt(0)')
    a('v_lshlrev_b32 v11, 16, v11'); a('v_lshlrev_b32 v8, 16, v8'); a('v_add_f32 v11, v11, v8')
    a('v_cvt_pk_bf16_f32 v11, v11, v11'); a('ds_write_b16 v10, v11')
    a('K2_NF:')
    q.waitall()
    a('s_barrier')
    st()
    AF, ACC, BR, NB, TMP = 64, 128, 160, 6, 184
    EP = 208
    lab = [0]
    def epilogue(gi, grp):
        lab[0] += 1; L = lab[0]
        q.waitall()
        st()
        n = len(grp)
        for j, c in enumerate(grp): a(f'ds_read_b128 v[{EP+4*j}:{EP+4*j+3}], v{VG} offset:{1024*c}')
        a('s_cmp_eq_u32 s50, 0'); a(f's_cbranch_scc0 K2_EB{L}')
        a('s_waitcnt lgkmcnt(0)')
        for j, c in enumerate(grp):
            for i in range(4): a(f'v_lshlrev_b32 v{EP+4*j+i}, 16, v{EP+4*j+i}')
            for i in range(4): a(f'v_mul_f32 v{EP+4*j+i}, v{EP+4*j+i}, v{ACC+4*c+i}')
            a(f'v_cvt_pk_bf16_f32 v{EP+4*j}, v{EP+4*j}, v{EP+4*j+1}'); a(f'v_cvt_pk_bf16_f32 v{EP+4*j+1}, v{EP+4*j+2}, v{EP+4*j+3}')
            a(f'ds_write_b64 v{VT}, v[{EP+4*j}:{EP+4*j+1}] offset:{640*c}')
        a(f's_branch K2_EJ{L}')
        a(f'K2_EB{L}:')
        XR = 26
        for j, c in enumerate(grp):
            for ph in range(4):
                a(f'ds_read_u16_d16_hi v{XR+4*j+ph}, v{VX} offset:{ph*1152+128*c}')
            if j % 2 == 1: a('s_waitcnt lgkmcnt(7)')
        a('s_waitcnt lgkmcnt(0)')
        for j, c in enumerate(grp):
            for i in range(4): a(f'v_and_b32 v{EP+4*j+i}, 0xffff0000, v{EP+4*j+i}')
            for i in range(4): a(f'v_mul_f32 v{EP+4*j+i}, v{EP+4*j+i}, v{ACC+4*c+i}')
            for i in range(4): a(f'v_and_b32 v{XR+4*j+i}, 0xffff0000, v{XR+4*j+i}')
            for i in range(4): a(f'v_mul_f32 v{EP+4*j+i}, v{EP+4*j+i}, v{XR+4*j+i}')
            a(f'v_cvt_pk_bf16_f32 v{EP+4*j}, v{EP+4*j}, v{EP+4*j+1}'); a(f'v_cvt_pk_bf16_f32 v{EP+4*j+1}, v{EP+4*j+2}, v{EP+4*j+3}')
            a(f'ds_write_b64 v{VT}, v[{EP+4*j}:{EP+4*j+1}] offset:{640*c}')
        a(f'K2_EJ{L}:')
        a('s_waitcnt lgkmcnt(0)')
        a('s_barrier')
        c0 = min(grp); npass = (256 * n) // 512
        F = 44
        for p in range(npass):
            off = 640 * c0 + 1280 * p
            a(f'ds_read_b64_tr_b16 v[{F+4*p}:{F+4*p+1}], v{VF} offset:{off}')
            a(f'ds_read_b64_tr_b16 v[{F+4*p+2}:{F+4*p+3}], v{VF} offset:{off + 4*TS}')
        a('s_waitcnt lgkmcnt(0)')
        for p in range(npass):
            A0, A1, B0, B1 = F+4*p, F+4*p+1, F+4*p+2, F+4*p+3
            t = 60 - 0
            a(f'v_lshlrev_b32 v26, 16, v{A0}'); a(f'v_and_b32 v27, 0xffff0000, v{A0}')
            a(f'v_lshlrev_b32 v28, 16, v{A1}'); a(f'v_and_b32 v29, 0xffff0000, v{A1}')
            a(f'v_lshlrev_b32 v30, 16, v{B0}'); a(f'v_and_b32 v31, 0xffff0000, v{B0}')
            a(f'v_lshlrev_b32 v32, 16, v{B1}'); a(f'v_and_b32 v33, 0xffff0000, v{B1}')
            for i in range(4): a(f'v_add_f32 v{26+i}, v{26+i}, v{30+i}')
            a(f'v_cvt_pk_bf16_f32 v{A0}, v26, v27'); a(f'v_cvt_pk_bf16_f32 v{A1}, v28, v29')
            a(f's_mov_b32 s59, {(256*c0 + 512*p) * 2048}')
            a(f'buffer_store_dwordx2 v[{A0}:{A1}], v{VO}, s[36:39], s59 offen')
        q.done = q.n
    gen_conv(a, q, groups, AF, ACC, BR, NB, TMP, VA, VB, VIDX, VZERO, epilogue)
    if STAMPS:
        st(); a('s_waitcnt vmcnt(0)')
    st(); st.dump(28)
    a('K2_END:')
    a('s_endpgm')
    return a, 256, K2_LDS

def kd(name, nv, ieee=0):
    return f""".p2align 6
.amdhsa_kernel {name}
  .amdhsa_next_free_vgpr {nv}
  .amdhsa_next_free_sgpr 102
  .amdhsa_accum_offset {((nv+3)//4)*4}
  .amdhsa_group_segment_fixed_size 0
  .amdhsa_kernarg_size 136
  .amdhsa_user_sgpr_count 2
  .amdhsa_user_sgpr_kernarg_segment_ptr 1
  .amdhsa_system_sgpr_workgroup_id_x 1
  .amdhsa_ieee_mode {ieee}
.end_amdhsa_kernel
"""

def build(path, groups):
    hdr = open('cdna_kernels/' + NAME + '.s.ref').read().split('\n')
    head = [l for l in hdr[:18] if l.startswith(';') and '@launch' not in l and 'Override' not in l and 'grid=ceil' not in l]
    k1, nv1, lds1 = gen_k1(); k2, nv2, lds2 = gen_k2(groups)
    out = head[:]
    out.append(f'; @launch kernel=k1_kernel grid=(256,1,1) block=(512,1,1) lds={lds1}')
    out.append(f'; @launch kernel=k2_kernel grid=(256,1,1) block=(512,1,1) lds={lds2}')
    out.append('.amdgcn_target "amdgcn-amd-amdhsa--gfx950"')
    out.append('.text')
    for nm, k in (('k1_kernel', k1), ('k2_kernel', k2)):
        out.append(f'.globl {nm}'); out.append('.p2align 8'); out.append(f'.type {nm},@function')
        lines, nn = k.finalize()
        print(nm, 'instrs', len(lines), 'nops inserted', nn)
        out += lines
    out.append('.section .rodata,"a"')
    out.append(kd('k1_kernel', nv1)); out.append(kd('k2_kernel', nv2))
    open(path, 'w').write('\n'.join(out) + '\n')

if __name__ == '__main__':
    import sys
    if len(sys.argv) > 3:
        gen1.STAMPS = True; STAMPS = True
        if sys.argv[3] == 'c': gen1.STAMPOP = 's_memtime'
    g = {'1': ((0,1,2,3,4,5,6,7),), '2': ((0,1,2,3),(4,5,6,7)), '3': ((0,1,2,3),(4,5),(6,7))}[sys.argv[2] if len(sys.argv) > 2 else '1']
    build(sys.argv[1], g)
```

```python
import sys
import gen1
from asmlib import Asm
from gen1 import srd, LOG2E, INV2PI, NAME, Stamper, gen_expand, WS_QU, WS_QKV, WS_G
from gen2 import DSQ, gen_conv, kd

WS_F1 = (12 << 20) + 8192
WS_F2 = WS_F1 + 2048
WS_SIZE = WS_F2 + 2048
REG = 8736; QOFF = 4128
CNT = 8 * REG
XT = CNT + 128
VT = XT + 16384
KT = VT + 16384
PAR = KT + 17408
PART = PAR + 10240
LDS = PART + 16384
TS = 5184
TA = XT; TB = XT + 4 * TS
KN = 'gated_mix__ssm_conv_s4d__ssm_conv_h3__prompt_kernel'
BGROUPS = ((0,1,2,3),(4,5),(6,7))
SPIN_MAX = 1 << 22

def kgen_step(a, s, PARB, acc, base):
    P = [base, base + 20]; Z = base + 40; T = base + 56; Y = base + 64; X = base + 80
    def rd(s):
        p = P[s & 1]
        for e in range(4): a(f'ds_read_b128 v[{p+4*e}:{p+4*e+3}], v{PARB} offset:{s*256+e*16}')
        a(f'ds_read_b128 v[{p+16}:{p+19}], v{PARB+1} offset:{s*64}')
    if s == 0: rd(0)
    p = P[s & 1]
    if s < 3:
        rd(s + 1); a('s_waitcnt lgkmcnt(5)')
    else:
        a('s_waitcnt lgkmcnt(0)')
    zr = [Z + 4*e for e in range(4)]; zi = [Z + 4*e + 1 for e in range(4)]
    xr = [Z + 4*e + 2 for e in range(4)]; xn = [Z + 4*e + 3 for e in range(4)]
    t = [T + 2*e for e in range(4)]; t2 = [T + 2*e + 1 for e in range(4)]
    E = range(4)
    for e in E: a(f'v_mul_f32 v{t[e]}, v{p+4*e}, v3')
    for e in E: a(f'v_mul_f32 v{t2[e]}, v{p+4*e+1}, v3')
    for e in E: a(f'v_exp_f32 v{t[e]}, v{t[e]}')
    for e in E: a(f'v_fract_f32 v{t2[e]}, v{t2[e]}')
    for e in E: a(f'v_cos_f32 v{zr[e]}, v{t2[e]}')
    for e in E: a(f'v_sin_f32 v{zi[e]}, v{t2[e]}')
    for e in E: a(f'v_mul_f32 v{zr[e]}, v{zr[e]}, v{t[e]}')
    for e in E: a(f'v_mul_f32 v{zi[e]}, v{zi[e]}, v{t[e]}')
    def sqall():
        for e in E: a(f'v_mul_f32 v{t[e]}, v{zi[e]}, v{zi[e]}')
        for e in E: a(f'v_mul_f32_e64 v{zi[e]}, v{zr[e]}, v{zi[e]} mul:2')
        for e in E: a(f'v_fma_f32 v{zr[e]}, v{zr[e]}, v{zr[e]}, -v{t[e]}')
    for b in range(4):
        for e in E: a(f'v_cvt_pk_bf16_f32 v{Y+4*b+e}, v{zr[e]}, v{zi[e]}')
        sqall()
    for e in E: a(f'v_mul_f32 v{t[e]}, v{p+4*e+3}, v{zi[e]}')
    for e in E: a(f'v_mul_f32 v{t2[e]}, v{p+4*e+3}, v{zr[e]}')
    for e in E: a(f'v_fma_f32 v{xr[e]}, v{p+4*e+2}, v{zr[e]}, -v{t[e]}')
    for e in E: a(f'v_fma_f32 v{xn[e]}, -v{p+4*e+2}, v{zi[e]}, -v{t2[e]}')
    for e in E: a(f'v_cvt_pk_bf16_f32 v{X+e}, v{xr[e]}, v{xn[e]}')
    for b in range(1, 4):
        for e in E: a(f'v_mul_f32 v{t[e]}, v{xn[e]}, v{zi[e]}')
        for e in E: a(f'v_mul_f32 v{t2[e]}, v{xn[e]}, v{zr[e]}')
        for e in E: a(f'v_fma_f32 v{xn[e]}, -v{xr[e]}, v{zi[e]}, v{t2[e]}')
        for e in E: a(f'v_fma_f32 v{xr[e]}, v{xr[e]}, v{zr[e]}, v{t[e]}')
        for e in E: a(f'v_cvt_pk_bf16_f32 v{X+4*b+e}, v{xr[e]}, v{xn[e]}')
        if b < 3: sqall()
    for e in E: a(f'v_cndmask_b32 v{X+12+e}, v{X+12+e}, v{p+16+e}, s[52:53]')
    for b in range(4):
        c = f'v[{acc+4*b}:{acc+4*b+3}]' if s > 0 else '0'
        a(f'v_mfma_f32_16x16x32_bf16 v[{acc+4*b}:{acc+4*b+3}], v[{Y+4*b}:{Y+4*b+3}], v[{X+4*b}:{X+4*b+3}], {c}')

_lab = [0]
def lds_spin(a, vaddr, vtmp, target, off=0):
    _lab[0] += 1; L = _lab[0]
    a(f's_mov_b32 s71, {SPIN_MAX}')
    a(f'SPL{L}:')
    a(f'ds_read_b32 v{vtmp}, v{vaddr} offset:{off}')
    a('s_waitcnt lgkmcnt(0)')
    a(f'v_readfirstlane_b32 s70, v{vtmp}')
    a(f's_cmp_ge_u32 s70, {target}')
    a(f's_cbranch_scc1 SPD{L}')
    a('s_sub_u32 s71, s71, 1')
    a('s_cmp_eq_u32 s71, 0')
    a(f's_cbranch_scc1 SPD{L}')
    a('s_sleep 1')
    a(f's_branch SPL{L}')
    a(f'SPD{L}:')

def gen_fused():
    a = Asm(); st = Stamper(a, 0)
    a(f'{KN}:')
    a('s_cmp_ge_u32 s2, 256')
    a('s_cbranch_scc1 KEND')
    st()
    a('s_load_dwordx4 s[4:7], s[0:1], 0')
    a('s_load_dwordx4 s[8:11], s[0:1], 16')
    a('s_load_dwordx4 s[12:15], s[0:1], 32')
    a('s_load_dwordx2 s[16:17], s[0:1], 48')
    a('s_load_dwordx4 s[20:23], s[0:1], 64')
    a('s_load_dwordx4 s[24:27], s[0:1], 80')
    a('s_load_dwordx4 s[72:75], s[0:1], 96')
    a('s_load_dwordx4 s[76:79], s[0:1], 112')
    a('s_load_dwordx2 s[28:29], s[0:1], 128')
    a('v_lshrrev_b32 v1, 6, v0')
    a('v_and_b32 v2, 63, v0')
    a('v_readfirstlane_b32 s48, v1')
    a('v_and_b32 v4, 15, v2')
    a('v_lshrrev_b32 v5, 4, v2')
    a('v_cvt_f32_u32 v3, v4')
    a('s_and_b32 s49, s48, 3')
    a('s_lshr_b32 s50, s48, 2')
    a('s_and_b32 s51, s2, 15')
    a('s_lshr_b32 s56, s2, 4')
    a('s_and_b32 s30, s2, 7'); a('s_lshl_b32 s30, s30, 5'); a('s_lshr_b32 s31, s2, 3'); a('s_add_u32 s30, s30, s31')
    a('s_lshl_b32 s30, s30, 2')
    a('s_add_u32 s31, s30, s49')
    a('s_mov_b32 s52, 0x00010001'); a('s_mov_b32 s53, 0x00010001')
    a('s_mov_b32 s54, 0xff00ff00'); a('s_mov_b32 s55, 0xff00ff00')
    a('s_mov_b64 s[64:65], 1')
    a(f's_mul_i32 s67, s48, {REG}')
    a('v_lshrrev_b32 v34, 3, v2'); a('v_and_b32 v35, 7, v2')
    a('v_and_b32 v36, 1, v5'); a('v_lshlrev_b32 v36, 1, v36')
    a('s_lshr_b32 s57, s48, 1'); a('s_and_b32 s57, s57, 1'); a('s_lshl_b32 s57, s57, 2')
    a('v_or_b32 v37, s57, v36'); a('v_xor_b32 v37, v37, v35'); a('v_lshlrev_b32 v37, 4, v37')
    a('v_lshl_add_u32 v37, v34, 11, v37')
    a('s_lshl_b32 s57, s56, 18'); a('s_lshl_b32 s58, s48, 15'); a('s_add_u32 s57, s57, s58')
    a('s_lshl_b32 s58, s51, 7'); a('s_add_u32 s60, s57, s58')
    a('s_lshl_b32 s61, s48, 11')
    a('v_lshrrev_b32 v38, 5, v2'); a('v_lshlrev_b32 v38, 1, v38')
    for h in range(2):
        a(f'v_or_b32 v39, {4*h}, v38'); a('v_xor_b32 v39, v39, v35'); a('v_lshlrev_b32 v39, 4, v39')
        a(f'v_lshl_add_u32 v{40+h}, v34, 11, v39')
    a('s_lshl_b32 s57, s31, 8'); a('s_lshl_b32 s58, s50, 7'); a('s_add_u32 s57, s57, s58')
    a('v_lshl_add_u32 v6, v2, 1, s57')
    a('s_lshl_b32 s57, s31, 1'); a('v_mov_b32 v7, s57')
    a('v_lshlrev_b32 v8, 5, v2')
    a('s_lshl_b32 s57, s2, 3'); a('s_add_u32 s59, s57, s48'); a('s_lshl_b32 s57, s59, 11'); a('v_add_u32 v9, s57, v8')
    a('s_lshl_b32 s57, s51, 9'); a('s_lshl_b32 s58, s49, 7'); a('s_add_u32 s57, s57, s58'); a('v_lshl_add_u32 v43, v4, 3, s57')
    a('v_lshlrev_b32 v44, 4, v2')
    for r in range(12, 16): a(f'v_mov_b32 v{r}, 0')
    a('v_lshrrev_b32 v10, 3, v2'); a('v_mul_u32_u24 v10, 1152, v10'); a('v_and_b32 v11, 7, v2')
    a('v_lshl_add_u32 v10, v11, 4, v10'); a(f'v_add_u32 v10, {QOFF}, v10')
    a('v_and_b32 v11, 1, v2'); a('v_lshlrev_b32 v11, 4, v11')
    a('v_cmp_gt_u32 vcc, 32, v2'); a('v_cndmask_b32 v10, v11, v10, vcc'); a('v_add_u32 v10, s67, v10')
    a('ds_write_b128 v10, v[12:15]')
    a('v_and_b32 v10, 7, v2'); a('v_lshlrev_b32 v10, 4, v10'); a(f'v_add_u32 v10, {CNT}, v10')
    a('ds_write_b128 v10, v[12:15]')
    a('s_waitcnt lgkmcnt(0)')
    srd(a, 32, 4, 4 << 20); srd(a, 36, 20, 4 << 20); srd(a, 40, 22, 4 << 20); srd(a, 44, 28, WS_SIZE)
    a('global_load_ushort v10, v6, s[6:7]'); a('global_load_ushort v11, v6, s[8:9]')
    a('global_load_ushort v12, v6, s[10:11]'); a('global_load_ushort v13, v6, s[12:13]')
    a('global_load_ushort v14, v7, s[14:15]'); a('global_load_ushort v15, v7, s[16:17]')
    for h in range(2):
        a(f's_add_u32 s57, s60, {h*8*2048}'); a(f's_add_u32 m0, s61, {XT + h*1024}')
        a(f'buffer_load_dwordx4 v{40+h}, s[32:35], s57 offen lds')
    for h in range(2):
        a(f's_add_u32 s57, s60, {h*8*2048}'); a(f's_sub_u32 s57, s57, {4*2048}'); a('v_add_u32 v42, s57, v37')
        a(f's_add_u32 m0, s61, {KT + h*1024}')
        a('buffer_load_dwordx4 v42, s[36:39], 0 offen lds')
        a(f's_add_u32 s57, s60, {h*8*2048}'); a(f's_add_u32 m0, s61, {VT + h*1024}')
        a('buffer_load_dwordx4 v37, s[40:43], s57 offen lds')
    a('s_cmp_lg_u32 s48, 7'); a('s_cbranch_scc1 NOX')
    a('v_xor_b32 v42, v36, v35'); a('v_lshlrev_b32 v42, 4, v42'); a('v_lshl_add_u32 v42, v34, 11, v42')
    a('s_lshl_b32 s57, s56, 18'); a(f's_add_u32 s57, s57, {124*2048}'); a('s_lshl_b32 s58, s51, 7'); a('s_add_u32 s57, s57, s58')
    a('v_add_u32 v42, s57, v42'); a(f's_mov_b32 m0, {KT + 128*128}'); a('s_nop 0')
    a('buffer_load_dwordx4 v42, s[36:39], 0 offen lds')
    a('NOX:')
    a('global_load_dwordx2 v[32:33], v43, s[24:25]')
    a('global_load_ushort v45, v7, s[72:73]')
    srd(a, 40, 78, 256)
    a('v_mov_b32 v46, 0')
    a('s_cmp_lg_u32 s48, 0'); a('s_cbranch_scc1 NONON')
    a('s_cmp_lg_u32 s2, 0'); a('s_cbranch_scc1 NONW')
    a('s_memrealtime s[68:69]'); a('s_waitcnt lgkmcnt(0)'); a('s_or_b32 s68, s68, 1')
    a('v_mov_b32 v54, s68'); a('v_mov_b32 v55, s69')
    a('s_mov_b64 exec, 1')
    a('buffer_store_dwordx2 v[54:55], v46, s[40:43], 0 offen sc1')
    a('s_mov_b64 exec, -1')
    a('NONW:')
    a('buffer_load_dwordx2 v[62:63], v46, s[40:43], 0 offen sc1')
    a('NONON:')
    NAFTER_PAR = 6 + 2
    st()
    a(f's_waitcnt vmcnt({NAFTER_PAR})')
    a(f's_mov_b32 s62, {LOG2E}'); a(f's_mov_b32 s63, {INV2PI}')
    for r in (10, 11, 12, 13, 14, 15): a(f'v_lshlrev_b32 v{r}, 16, v{r}')
    a('v_mul_f32 v14, s62, v14'); a('v_mul_f32 v10, s62, v10')
    a('v_exp_f32 v14, v14'); a('v_exp_f32 v10, v10')
    a('v_cvt_pk_bf16_f32 v14, v14, v14'); a('v_cvt_pk_bf16_f32 v10, v10, v10')
    a('v_lshlrev_b32 v14, 16, v14'); a('v_lshlrev_b32 v10, 16, v10')
    a('v_mul_f32 v48, v10, v14'); a('v_mul_f32 v49, v11, v14')
    a('v_mul_f32 v48, s62, v48'); a('v_sub_f32 v48, 0, v48'); a('v_mul_f32 v49, s63, v49')
    a('v_add_f32 v14, v14, v14'); a('v_mul_f32 v50, v12, v14'); a('v_mul_f32 v51, v13, v14')
    a(f's_mul_i32 s57, s48, 1280'); a(f's_add_u32 s57, s57, {PAR}')
    a('v_lshl_add_u32 v52, v2, 4, s57'); a('ds_write_b128 v52, v[48:51]')
    a('s_mov_b32 s58, 0x45000000')
    a('v_mul_f32 v54, s58, v48'); a('v_mul_f32 v55, s58, v49')
    a('v_exp_f32 v54, v54'); a('v_fract_f32 v55, v55'); a('v_cos_f32 v56, v55'); a('v_sin_f32 v57, v55')
    a('v_mul_f32 v56, v56, v54'); a('v_mul_f32 v57, v57, v54')
    a('v_mul_f32 v58, v51, v57'); a('v_mul_f32 v59, v51, v56')
    a('v_fma_f32 v58, v50, v56, -v58'); a('v_fma_f32 v59, -v50, v57, -v59')
    a('v_cvt_pk_bf16_f32 v58, v58, v59')
    a('s_add_u32 s57, s57, 1024'); a('v_lshl_add_u32 v53, v2, 2, s57'); a('ds_write_b32 v53, v58')
    a('s_sub_u32 s58, s57, 1024'); a('v_lshl_add_u32 v60, v5, 6, s58'); a('v_lshl_add_u32 v61, v5, 4, s57')
    a('s_waitcnt lgkmcnt(0)')
    ACC = 64; KB = 80
    for s in range(2): kgen_step(a, s, 60, ACC, KB)
    st()
    a('s_cmp_lg_u32 s48, 0'); a('s_cbranch_scc1 NON2')
    a(f's_mov_b32 s71, {SPIN_MAX}')
    a('NONL:')
    a('s_waitcnt vmcnt(0)')
    a('v_readfirstlane_b32 s68, v62')
    a('s_cmp_lg_u32 s68, 0'); a('s_cbranch_scc1 NONOK')
    a('s_sub_u32 s71, s71, 1'); a('s_cmp_eq_u32 s71, 0'); a('s_cbranch_scc1 NONOK')
    a('s_sleep 4')
    a('buffer_load_dwordx2 v[62:63], v46, s[40:43], 0 offen sc1')
    a('s_branch NONL')
    a('NONOK:')
    a(f'v_mov_b32 v48, {CNT + 40}')
    a('ds_write_b64 v48, v[62:63]')
    a('s_waitcnt lgkmcnt(0)')
    a('NON2:')
    a('s_waitcnt vmcnt(2) lgkmcnt(5)')
    a('s_barrier')
    st()
    a('v_lshrrev_b32 v46, 2, v4'); a('v_and_b32 v47, 3, v2'); a('v_lshrrev_b32 v62, 1, v47')
    a('s_lshl_b32 s57, s49, 1'); a('v_add_u32 v62, s57, v62')
    a('v_lshlrev_b32 v63, 1, v46'); a('v_xor_b32 v63, v62, v63'); a('v_lshlrev_b32 v63, 4, v63')
    a('v_and_b32 v48, 1, v47'); a('v_lshlrev_b32 v48, 3, v48')
    a('v_add_u32 v63, v63, v48'); a('v_lshl_add_u32 v63, v46, 9, v63'); a('v_lshl_add_u32 v63, v5, 12, v63')
    a(f's_lshl_b32 s57, s50, 8'); a(f's_add_u32 s57, s57, {XT}'); a('v_add_u32 v63, s57, v63')
    U = 236
    for p2 in range(2):
        for h in range(2):
            a(f'ds_read_b64_tr_b16 v[{U+4*p2+2*h}:{U+4*p2+2*h+1}], v63 offset:{(16*h+p2)*128}')
    a('v_lshrrev_b32 v49, 1, v46'); a('v_lshlrev_b32 v49, 1, v49'); a('v_and_b32 v50, 1, v5'); a('v_lshl_or_b32 v49, v50, 2, v49')
    a('v_xor_b32 v50, v62, v49'); a('v_xor_b32 v51, 4, v50')
    a('v_lshl_add_u32 v48, v46, 7, v48'); a('v_lshl_add_u32 v48, v5, 12, v48'); a(f'v_add_u32 v48, {VT}, v48')
    a('v_lshl_add_u32 v50, v50, 4, v48'); a('v_lshl_add_u32 v51, v51, 4, v48')
    KD, VD, KF, KV, O = 120, 138, 176, 212, 228
    for h in range(8): a(f'ds_read_b64_tr_b16 v[{KD+2*h}:{KD+2*h+1}], v50 offset:{KT - VT + 512*h}')
    a(f'ds_read_b64_tr_b16 v[{KD+16}:{KD+17}], v51 offset:{KT - VT + 512*8}')
    a('s_lshl_b32 s57, s51, 18'); a('s_lshl_b32 s58, s49, 16'); a('s_add_u32 s57, s57, s58')
    a('s_lshl_b32 s58, s56, 6'); a('s_add_u32 s57, s57, s58'); a('s_lshl_b32 s58, s50, 11'); a('s_add_u32 s57, s57, s58')
    a('v_lshlrev_b32 v52, 12, v4'); a('v_lshl_add_u32 v52, v5, 4, v52'); a('v_add_u32 v52, s57, v52')
    a('s_waitcnt lgkmcnt(9)')
    for p2 in range(2):
        a(f's_mov_b32 s58, {WS_QU + p2*1024}')
        a(f'buffer_store_dwordx4 v[{U+4*p2}:{U+4*p2+3}], v52, s[44:47], s58 offen sc1')
    for h in range(8): a(f'ds_read_b64_tr_b16 v[{VD+2*h}:{VD+2*h+1}], v50 offset:{512*h}')
    a('s_waitcnt vmcnt(3)')
    a('v_lshlrev_b32 v56, 16, v32'); a('v_and_b32 v57, 0xffff0000, v32')
    a('v_lshlrev_b32 v58, 16, v33'); a('v_and_b32 v59, 0xffff0000, v33')
    a('s_waitcnt lgkmcnt(8)')
    for d in range(18):
        a(f'v_lshlrev_b32 v{KF+2*d}, 16, v{KD+d}'); a(f'v_and_b32 v{KF+2*d+1}, 0xffff0000, v{KD+d}')
    a('s_cmp_eq_u32 s50, 0'); a('s_cbranch_scc0 KV1')
    for hh in range(2):
        if hh == 1: a('KV1:')
        ts = [4*y + 2*hh + p2 for p2 in range(2) for y in range(8)]
        for i, t in enumerate(ts): a(f'v_mul_f32 v{KV+i}, v56, v{KF+t+4}')
        for i, t in enumerate(ts): a(f'v_fmac_f32 v{KV+i}, v57, v{KF+t+3}')
        for i, t in enumerate(ts): a(f'v_fmac_f32 v{KV+i}, v58, v{KF+t+2}')
        for i, t in enumerate(ts): a(f'v_fmac_f32 v{KV+i}, v59, v{KF+t+1}')
        a('s_waitcnt lgkmcnt(0)')
        for i, t in enumerate(ts):
            d = VD + 2*(t//4) + hh
            if t & 1: a(f'v_and_b32 v{KF+i}, 0xffff0000, v{d}')
            else: a(f'v_lshlrev_b32 v{KF+i}, 16, v{d}')
        for i in range(16): a(f'v_mul_f32 v{KV+i}, v{KV+i}, v{KF+i}')
        if hh == 0: a('s_branch KV2')
    a('KV2:')
    for p2 in range(2):
        for jj in range(4): a(f'v_cvt_pk_bf16_f32 v{O+4*p2+jj}, v{KV+8*p2+2*jj}, v{KV+8*p2+2*jj+1}')
        a(f's_mov_b32 s58, {WS_QKV + p2*1024}')
        a(f'buffer_store_dwordx4 v[{O+4*p2}:{O+4*p2+3}], v52, s[44:47], s58 offen sc1')
    srd(a, 36, 26, 4 << 20)
    a(f's_add_u32 s57, s49, 4'); a(f's_mul_i32 s57, s57, {REG}'); a('s_lshl_b32 s58, s50, 11'); a('s_add_u32 s57, s57, s58')
    a('s_lshl_b32 s62, s31, 12'); a('s_add_u32 s62, s62, s58')
    for i in range(2):
        a(f's_add_u32 m0, s57, {32 + i*1024}'); a(f's_add_u32 s63, s62, {i*1024}')
        a('buffer_load_dwordx4 v44, s[36:39], s63 offen lds')
    st()
    a('s_waitcnt lgkmcnt(0)')
    for s_ in (2, 3): kgen_step(a, s_, 60, ACC, KB)
    a(f's_lshl_b32 s57, s49, 12'); a(f's_add_u32 s57, s57, {PART}'); a('v_lshl_add_u32 v60, v2, 4, s57')
    a('s_cmp_eq_u32 s50, 0'); a('s_cbranch_scc1 H0')
    for b in range(4): a(f'ds_write_b128 v60, v[{ACC+4*b}:{ACC+4*b+3}] offset:{b*1024}')
    a('H0:')
    a(f'v_mov_b32 v46, {CNT}')
    a('ds_read_b64 v[62:63], v46 offset:40')
    a('s_waitcnt vmcnt(0)')
    a('v_mov_b32 v47, 1')
    a('s_mov_b64 exec, 1')
    a('ds_add_rtn_u32 v48, v46, v47')
    a('s_waitcnt lgkmcnt(0)')
    a('v_readfirstlane_b32 s57, v48')
    a('s_cmp_eq_u32 s57, 7'); a('s_cbranch_scc0 NOFLAG')
    a('s_lshl_b32 s57, s51, 7'); a('s_lshl_b32 s58, s56, 3'); a('s_add_u32 s57, s57, s58'); a(f's_add_u32 s57, s57, {WS_F1}')
    a('v_mov_b32 v48, 0')
    a('buffer_store_dwordx2 v[62:63], v48, s[44:47], s57 offen sc1')
    a('NOFLAG:')
    a('s_mov_b64 exec, -1')
    a('s_barrier')
    st()
    srd(a, 36, 76, 4 << 20)
    a('v_mov_b32 v47, 1')
    a('s_cmp_eq_u32 s50, 0'); a('s_cbranch_scc0 WB')
    for b in range(4): a(f'ds_read_b128 v[{80+4*b}:{80+4*b+3}], v60 offset:{b*1024}')
    a('s_waitcnt lgkmcnt(0)')
    for i in range(16): a(f'v_add_f32 v{ACC+i}, v{ACC+i}, v{80+i}')
    a('v_mov_b32 v100, 0'); a('v_cndmask_b32 v100, v100, v15, s[64:65]'); a(f'v_add_f32 v{ACC}, v{ACC}, v100')
    a('s_add_u32 s57, s67, 32'); a('v_mov_b32 v101, s57')
    gen_expand(a, ACC, 101, 120)
    a('s_branch WJ')
    a('WB:')
    a('s_lshl_b32 s57, s2, 3'); a('s_lshl_b32 s58, s49, 1'); a('s_add_u32 s59, s57, s58'); a('s_lshl_b32 s57, s59, 11')
    a('v_add_u32 v9, s57, v8')
    a('global_load_dwordx4 v[80:83], v9, s[4:5]'); a('global_load_dwordx4 v[84:87], v9, s[4:5] offset:16')
    a('global_load_dwordx4 v[88:91], v9, s[4:5] offset:2048'); a('global_load_dwordx4 v[92:95], v9, s[4:5] offset:2064')
    a('global_load_dwordx4 v[96:99], v8, s[74:75]'); a('global_load_dwordx4 v[100:103], v8, s[74:75] offset:16')
    a('s_add_u32 s57, s67, 32'); a('v_mov_b32 v10, s57')
    a('ds_read_u16 v11, v10'); a('s_waitcnt lgkmcnt(0)')
    a('v_lshlrev_b32 v11, 16, v11'); a('v_lshlrev_b32 v45, 16, v45'); a('v_add_f32 v11, v11, v45')
    a('v_cvt_pk_bf16_f32 v11, v11, v11'); a('ds_write_b16 v10, v11')
    a('WJ:')
    st()
    VA, VB, VIDX, VZERO, VT_, VX, VF, VO, VC = 16, 17, 18, 19, 20, 22, 23, 24, 25
    a('v_lshrrev_b32 v10, 2, v4'); a('v_and_b32 v11, 3, v2'); a('v_sub_u32 v11, v11, v10'); a('v_lshlrev_b32 v11, 3, v11')
    a('v_lshlrev_b32 v10, 6, v5'); a('v_sub_u32 v11, v11, v10'); a('s_add_u32 s59, s67, 224'); a(f'v_add_u32 v{VA}, s59, v11')
    a('v_lshlrev_b32 v10, 3, v4'); a('v_lshl_add_u32 v10, v5, 4, v10'); a(f's_add_u32 s59, s67, {QOFF + 8}'); a(f'v_add_u32 v{VB}, s59, v10')
    a('v_add_u32 v10, -1, v4'); a('v_and_b32 v10, 15, v10'); a('v_add_u32 v10, 48, v10')
    a('v_add_u32 v11, -16, v2'); a('v_cmp_gt_u32 vcc, 16, v2'); a('v_cndmask_b32 v10, v11, v10, vcc'); a(f'v_lshlrev_b32 v{VIDX}, 2, v10')
    a(f'v_mov_b32 v{VZERO}, 0')
    a(f's_mul_i32 s59, s49, {TS}'); a(f's_mul_i32 s60, s50, {4*TS}'); a('s_add_u32 s59, s59, s60'); a(f's_add_u32 s59, s59, {TA}')
    a('v_mul_u32_u24 v10, 40, v4'); a('v_lshl_add_u32 v10, v5, 3, v10'); a(f'v_add_u32 v{VT_}, s59, v10')
    a(f's_mul_i32 s59, s49, {REG}'); a(f's_add_u32 s59, s59, {QOFF + 128}')
    a('v_lshlrev_b32 v10, 3, v4'); a('v_lshl_add_u32 v10, v5, 1, v10'); a(f'v_add_u32 v{VX}, s59, v10')
    a('v_lshrrev_b32 v10, 2, v4'); a(f'v_mul_u32_u24 v10, {TS}, v10'); a('v_and_b32 v11, 3, v2'); a('v_lshl_add_u32 v10, v11, 3, v10')
    a('v_mul_u32_u24 v11, 40, v5'); a('v_add_u32 v10, v10, v11')
    a('s_mul_i32 s59, s49, 160'); a(f's_add_u32 s59, s59, {TA}'); a(f'v_add_u32 v{VF}, s59, v10')
    a('s_lshl_b32 s59, s49, 17'); a('s_lshl_b32 s60, s30, 1'); a('s_add_u32 s59, s59, s60')
    a(f'v_lshlrev_b32 v10, 11, v2'); a(f'v_add_u32 v{VO}, s59, v10')
    a(f'v_mov_b32 v{VC}, {CNT}')
    a('s_cmp_lg_u32 s48, 0'); a('s_cbranch_scc1 POLLO')
    a('s_lshr_b32 s57, s30, 6'); a('s_lshl_b32 s57, s57, 7'); a(f's_add_u32 s57, s57, {WS_F1}')
    a('v_lshlrev_b32 v10, 3, v2')
    a(f's_mov_b32 s71, {SPIN_MAX}')
    a('s_mov_b64 exec, 0xffff')
    a('POLL:')
    a('buffer_load_dwordx2 v[12:13], v10, s[44:47], s57 offen sc1')
    a('s_waitcnt vmcnt(0)')
    a('v_xor_b32 v12, v12, v62'); a('v_xor_b32 v13, v13, v63'); a('v_or_b32 v12, v12, v13')
    a('v_cmp_ne_u32 vcc, 0, v12')
    a('s_cmp_eq_u64 vcc, 0'); a('s_cbranch_scc1 POLLD')
    a('s_sub_u32 s71, s71, 1'); a('s_cmp_eq_u32 s71, 0'); a('s_cbranch_scc1 POLLD')
    a('s_sleep 1'); a('s_branch POLL')
    a('POLLD:')
    a('s_mov_b64 exec, 1')
    a(f'ds_add_u32 v{VC}, v47 offset:24')
    a('s_mov_b64 exec, -1')
    a('s_branch POLLE')
    a('POLLO:')
    lds_spin(a, VC, 48, 1, 24)
    a('POLLE:')
    st()
    QR = 26
    M = 208
    a('s_lshl_b32 s58, s31, 12'); a(f's_mul_i32 s59, s50, {WS_QKV}'); a('s_add_u32 s58, s58, s59')
    for ph in range(4):
        a(f's_add_u32 s59, s58, {ph*1024}')
        a(f'buffer_load_dwordx4 v[{QR+4*ph}:{QR+4*ph+3}], v44, s[44:47], s59 offen sc1')
    a(f's_add_u32 s59, s67, {QOFF + 128}'); a('v_add_u32 v11, s59, v44')
    a('s_cmp_eq_u32 s50, 0'); a('s_cbranch_scc1 NOG')
    a('s_waitcnt vmcnt(4)')
    for rr in range(2):
        a(f'v_mov_b32 v{104+rr}, 0'); a(f'v_mov_b32 v{106+rr}, 0')
    for i in range(4):
        for rr in range(2):
            a(f'v_dot2c_f32_bf16 v{104+rr}, v{80+8*rr+i}, v{96+i}'); a(f'v_dot2c_f32_bf16 v{106+rr}, v{84+8*rr+i}, v{100+i}')
    a('s_nop 3')
    for rr in range(2): a(f'v_add_f32 v{104+rr}, v{104+rr}, v{106+rr}')
    for sh in (1, 2, 4, 8):
        for rr in range(2): a(f'v_add_f32_dpp v{104+rr}, v{104+rr}, v{104+rr} row_shr:{sh} row_mask:0xf bank_mask:0xf bound_ctrl:0')
    for rr in range(2): a(f'v_add_f32_dpp v{104+rr}, v{104+rr}, v{104+rr} row_bcast:15 row_mask:0xa bank_mask:0xf')
    for rr in range(2): a(f'v_add_f32_dpp v{104+rr}, v{104+rr}, v{104+rr} row_bcast:31 row_mask:0xc bank_mask:0xf')
    a('v_readlane_b32 s57, v104, 63'); a('v_readlane_b32 s58, v105, 63')
    a('v_mov_b32 v104, s57'); a('v_mov_b32 v105, s58')
    a('v_cndmask_b32 v104, v105, v104, s[64:65]')
    a('v_cvt_pk_bf16_f32 v104, v104, v104'); a('v_lshlrev_b32 v104, 16, v104')
    a(f's_mov_b32 s62, {LOG2E}')
    a('v_mul_f32 v104, s62, v104'); a('v_sub_f32 v104, 0, v104')
    a('v_exp_f32 v104, v104'); a('v_add_f32 v104, 1.0, v104'); a('v_rcp_f32 v104, v104')
    a('v_cvt_pk_bf16_f32 v104, v104, v104'); a('v_lshlrev_b32 v104, 16, v104')
    a('v_sub_f32 v105, 1.0, v104'); a('v_cvt_pk_bf16_f32 v104, v104, v105')
    a('s_lshl_b32 s57, s2, 3'); a('s_lshl_b32 s58, s49, 1'); a('s_add_u32 s57, s57, s58'); a('s_lshl_b32 s57, s57, 2'); a(f's_add_u32 s57, s57, {WS_G}')
    a('v_lshlrev_b32 v105, 2, v2')
    a('s_mov_b64 exec, 3')
    a('buffer_store_dword v104, v105, s[44:47], s57 offen sc1')
    a('s_mov_b64 exec, -1')
    a('s_waitcnt vmcnt(1)')
    a('s_branch NOG2')
    a('NOG:')
    a('s_waitcnt vmcnt(0)')
    a('NOG2:')
    for ph in range(4): a(f'ds_write_b128 v11, v[{QR+4*ph}:{QR+4*ph+3}] offset:{ph*1152}')
    AF, CACC, BR, NB, TMP = 64, 128, 160, 6, 184
    a('s_cmp_eq_u32 s50, 0'); a('s_cbranch_scc0 CONVB')
    a('s_setprio 1')
    a('s_waitcnt lgkmcnt(0)')
    a('v_mov_b32 v47, 1'); a('s_mov_b64 exec, 1'); a(f'ds_add_u32 v{VC}, v47 offset:4'); a('s_mov_b64 exec, -1')
    st()
    q = DSQ(a); q.n = 1
    def epiA(gi, grp):
        q.waitall()
        st()
        for c in grp:
            a(f'v_cvt_pk_bf16_f32 v{M+4*c}, v{CACC+4*c}, v{CACC+4*c+1}'); a(f'v_cvt_pk_bf16_f32 v{M+4*c+1}, v{CACC+4*c+2}, v{CACC+4*c+3}')
            a(f'ds_write_b64 v{VT_}, v[{M+4*c}:{M+4*c+1}] offset:{640*c}')
        a('s_cmp_lg_u32 s48, 0'); a('s_cbranch_scc1 PAO')
        a(f's_mov_b32 s71, {SPIN_MAX}')
        a('PA:')
        a(f's_mov_b32 s57, {WS_F2}')
        a('buffer_load_dwordx4 v[64:67], v44, s[44:47], s57 offen sc1')
        a('buffer_load_dwordx4 v[68:71], v44, s[44:47], s57 offen offset:1024 sc1')
        a('s_waitcnt vmcnt(0)')
        for i in range(8): a(f'v_xor_b32 v{64+i}, v{64+i}, v{62+(i&1)}')
        for i in range(1, 8): a(f'v_or_b32 v64, v64, v{64+i}')
        a('v_cmp_ne_u32 vcc, 0, v64')
        a('s_cmp_eq_u64 vcc, 0'); a('s_cbranch_scc1 PAD')
        a('s_sub_u32 s71, s71, 1'); a('s_cmp_eq_u32 s71, 0'); a('s_cbranch_scc1 PAD')
        a('s_sleep 2'); a('s_branch PA')
        a('PAD:')
        a('s_mov_b64 exec, 1'); a(f'ds_add_u32 v{VC}, v47 offset:28'); a('s_mov_b64 exec, -1')
        a('PAO:')
        a('s_waitcnt lgkmcnt(0)')
        a('s_mov_b64 exec, 1'); a(f'ds_add_u32 v{VC}, v47 offset:8'); a('s_mov_b64 exec, -1')
        lds_spin(a, VC, 48, 1, 28)
        a('s_lshl_b32 s57, s49, 8'); a('v_lshl_add_u32 v49, v2, 2, s57')
        for c in range(8):
            a(f's_mov_b32 s59, {WS_G + 1024*c}')
            a(f'buffer_load_dword v{96+c}, v49, s[44:47], s59 offen sc1')
        lds_spin(a, VC, 48, 4, 8)
        F = 64
        a('s_waitcnt vmcnt(0)')
        for gi2, g2 in enumerate(BGROUPS):
            lds_spin(a, VC, 48, 4, 12 + 4*gi2)
            c0 = min(g2); npass = len(g2)
            for p in range(npass):
                off = 640 * (c0 + p)
                a(f'ds_read_b64_tr_b16 v[{F+4*p}:{F+4*p+1}], v{VF} offset:{off}')
                a(f'ds_read_b64_tr_b16 v[{F+4*p+2}:{F+4*p+3}], v{VF} offset:{off + 4*TS}')
            for p in range(npass):
                a(f's_waitcnt lgkmcnt({2*(npass-1-p)})')
                A0, A1, B0, B1 = F+4*p, F+4*p+1, F+4*p+2, F+4*p+3
                G = 96 + c0 + p
                a(f'v_lshlrev_b32 v34, 16, v{G}'); a(f'v_and_b32 v35, 0xffff0000, v{G}')
                a(f'v_lshlrev_b32 v26, 16, v{A0}'); a(f'v_and_b32 v27, 0xffff0000, v{A0}')
                a(f'v_lshlrev_b32 v28, 16, v{A1}'); a(f'v_and_b32 v29, 0xffff0000, v{A1}')
                a(f'v_lshlrev_b32 v30, 16, v{B0}'); a(f'v_and_b32 v31, 0xffff0000, v{B0}')
                a(f'v_lshlrev_b32 v32, 16, v{B1}'); a(f'v_and_b32 v33, 0xffff0000, v{B1}')
                for i in range(4): a(f'v_mul_f32 v{26+i}, v{26+i}, v34')
                for i in range(4): a(f'v_fmac_f32 v{26+i}, v{30+i}, v35')
                a(f'v_cvt_pk_bf16_f32 v{A0}, v26, v27'); a(f'v_cvt_pk_bf16_f32 v{A1}, v28, v29')
                a(f's_mov_b32 s59, {256*(c0+p) * 2048}')
                a(f'buffer_store_dwordx2 v[{A0}:{A1}], v{VO}, s[36:39], s59 offen')
            F += 4 * npass
    gen_conv(a, q, ((0,1,2,3,4,5,6,7),), AF, CACC, BR, NB, TMP, VA, VB, VIDX, VZERO, epiA)
    a('s_branch KFIN')
    a('CONVB:')
    a('s_waitcnt vmcnt(0) lgkmcnt(0)')
    a('s_mov_b64 exec, 1')
    a(f'ds_add_rtn_u32 v48, v{VC}, v47 offset:36')
    a('s_waitcnt lgkmcnt(0)')
    a('v_readfirstlane_b32 s57, v48')
    a('s_cmp_eq_u32 s57, 3'); a('s_cbranch_scc0 NOF2')
    a('s_lshl_b32 s57, s2, 3'); a(f's_add_u32 s57, s57, {WS_F2}'); a('v_mov_b32 v48, 0')
    a('buffer_store_dwordx2 v[62:63], v48, s[44:47], s57 offen sc1')
    a('NOF2:')
    a('s_mov_b64 exec, -1')
    st.n = 8; st()
    q2 = DSQ(a)
    XR = 26
    def epiB(gi, grp):
        q2.waitall()
        if gi == 0:
            lds_spin(a, VC, 48, 4, 4)
        for j, c in enumerate(grp):
            for ph in range(4): a(f'ds_read_u16_d16_hi v{XR+4*j+ph}, v{VX} offset:{ph*1152+128*c}')
            if j == 1: a('s_waitcnt lgkmcnt(4)')
        a('s_waitcnt lgkmcnt(0)')
        for j, c in enumerate(grp):
            for i in range(4): a(f'v_and_b32 v{XR+4*j+i}, 0xffff0000, v{XR+4*j+i}')
            for i in range(4): a(f'v_mul_f32 v{XR+4*j+i}, v{XR+4*j+i}, v{CACC+4*c+i}')
            a(f'v_cvt_pk_bf16_f32 v{M+4*c}, v{XR+4*j}, v{XR+4*j+1}'); a(f'v_cvt_pk_bf16_f32 v{M+4*c+1}, v{XR+4*j+2}, v{XR+4*j+3}')
            a(f'ds_write_b64 v{VT_}, v[{M+4*c}:{M+4*c+1}] offset:{640*c}')
        a('s_waitcnt lgkmcnt(0)')
        a('s_mov_b64 exec, 1'); a(f'ds_add_u32 v{VC}, v47 offset:{12+4*gi}'); a('s_mov_b64 exec, -1')
        q2.n += 1
        if gi == len(BGROUPS) - 1:
            st.n = 9; st()
    gen_conv(a, q2, BGROUPS, AF, CACC, BR, NB, TMP, VA, VB, VIDX, VZERO, epiB)
    a('KFIN:')
    if gen1.STAMPS:
        a('s_waitcnt vmcnt(0)')
    st.n = 10; st(); st.n = 11
    st.dump(28)
    a('KEND:')
    a('s_endpgm')
    return a, 256, LDS

def build(path):
    hdr = open('cdna_kernels/' + NAME + '.s.ref').read().split('\n')
    head = [l for l in hdr[:18] if l.startswith(';') and '@launch' not in l and 'Override' not in l and 'grid=ceil' not in l]
    k, nv, lds = gen_fused()
    out = head[:]
    out.append(f'; @launch grid=(256,1,1) block=(512,1,1) lds={lds}')
    out.append('.amdgcn_target "amdgcn-amd-amdhsa--gfx950"'); out.append('.text')
    out.append(f'.globl {KN}'); out.append('.p2align 8'); out.append(f'.type {KN},@function')
    lines, nn = k.finalize(); print('instrs', len(lines), 'nops', nn)
    out += lines
    out.append('.section .rodata,"a"'); out.append(kd(KN, nv))
    open(path, 'w').write('\n'.join(out) + '\n')

if __name__ == '__main__':
    if len(sys.argv) > 2:
        gen1.STAMPS = True
        if sys.argv[2] == 'c': gen1.STAMPOP = 's_memtime'
    build(sys.argv[1])
```

```python
import sys
import gen1
from asmlib import Asm
from gen1 import srd, LOG2E, INV2PI, NAME, gen_expand, WS_QU, WS_QKV, WS_G
from gen2 import DSQ, kd
from gen4 import kgen_step, lds_spin, SPIN_MAX

WS_F1 = (12 << 20) + 8192
WS_F2 = WS_F1 + 2048
WS_SIZE = WS_F2 + 2048
WS_DBG = 13 << 20
REG = 8736; QOFF = 4128
CNT = 8 * REG
XT = CNT + 128
VT = XT + 16384
KT = VT + 16384
PAR = KT + 17408
PART = PAR + 10240
LDS = PART + 16384
TS = 5184
TA = XT; TB = XT + 4 * TS
KN = 'gated_mix__ssm_conv_s4d__ssm_conv_h3__prompt_kernel'
GROUPS = ((0,1,2,3),(4,5),(6,7))
C_PUB, C_T, C_P, C_Q, C_F1, C_F2, C_PUB2, C_NON, C_A, C_B = 0, 4, 8, 12, 16, 20, 24, 32, 40, 56

class St:
    def __init__(self, a): self.a = a
    def __call__(self, n):
        if gen1.STAMPS: self.a(f'{gen1.STAMPOP} s[{80+2*n}:{81+2*n}]')
    def dump(self, n):
        if not gen1.STAMPS: return
        a = self.a
        a('s_waitcnt vmcnt(0) lgkmcnt(0)')
        a('s_mul_i32 s66, s2, 12'); a('s_add_u32 s66, s66, s48'); a('s_lshl_b32 s66, s66, 7'); a(f's_add_u32 s66, s66, {WS_DBG}')
        a('v_mov_b32 v1, s66'); a('s_mov_b64 exec, 1')
        for i in range(n):
            a(f'v_mov_b32 v2, s{80+2*i}'); a(f'v_mov_b32 v3, s{81+2*i}')
            a(f'global_store_dwordx2 v1, v[2:3], s[28:29] offset:{8*i}')
        a('s_mov_b64 exec, -1')

def lds_inc(a, VC, V1, off):
    a('s_mov_b64 exec, 1'); a(f'ds_add_u32 v{VC}, v{V1} offset:{off}'); a('s_mov_b64 exec, -1')

def conv(a, q, groups, AF, ACC, BR, NB, TMP, VA, VB, VIDX, VZERO, epilogue):
    items = []
    for gi, grp in enumerate(groups):
        for ph in (3, 2, 1, 0):
            for mu in range(-1, 2 * max(grp) + 1):
                items.append((gi, ph, mu, [c for c in grp if mu <= 2 * c]))
    c0of = {}
    for grp in groups:
        for c in grp: c0of[c] = min(grp)
    def acc(c): return ACC + 4 * (c - c0of[c])
    btag = {}; atag = {}
    def loadB(i):
        gi, ph, mu, _ = items[i]
        s = BR + 4 * (i % NB); off = ph * 1152 + 64 * (mu + 1)
        q.issue(f'ds_read_b64 v[{s}:{s+1}], v{VB} offset:{off}')
        btag[i] = q.issue(f'ds_read_b64 v[{s+2}:{s+3}], v{VB} offset:{off+8}')
    def loadA(m):
        r = AF + 4 * m
        q.issue(f'ds_read_b64_tr_b16 v[{r}:{r+1}], v{VA} offset:{256*m+32}')
        atag[m] = q.issue(f'ds_read_b64_tr_b16 v[{r+2}:{r+3}], v{VA} offset:{256*m}')
    aorder = []
    for gi, ph, mu, cs in items:
        for c in cs:
            m = 2 * c - mu
            if m not in aorder: aorder.append(m)
    first_use = {}
    for i, (gi, ph, mu, cs) in enumerate(items):
        for c in cs: first_use.setdefault(2 * c - mu, i)
    apend = list(aorder)
    def tmpreg(c, ph):
        for gi, grp in enumerate(groups):
            if c == max(grp) and gi < len(groups) - 1: return TMP + 4 + 3 * gi + (ph - 1)
        return TMP + (c - c0of[c])
    pend = []; nm = [0]
    def shift_bperm(e):
        c, ph = e['c'], e['ph']
        e['tag'] = q.issue(f'ds_bpermute_b32 v{tmpreg(c,ph)}, v{VIDX}, v{acc(c)+3}')
        e['stage'] = 1; e['since'] = nm[0]
    def shift_fin(e):
        c, ph = e['c'], e['ph']
        q.wait(e['tag'])
        r = acc(c)
        prev = f'v{tmpreg(c-1,ph)}' if c > 0 else f'v{VZERO}'
        a(f'v_mov_b32 v{r+3}, v{r+2}'); a(f'v_mov_b32 v{r+2}, v{r+1}'); a(f'v_mov_b32 v{r+1}, v{r}')
        a(f'v_cndmask_b32 v{r}, v{tmpreg(c,ph)}, {prev}, s[64:65]')
        e['stage'] = 2
    def progress(force_c=None):
        for e in list(pend):
            if e['stage'] == 0 and (nm[0] - e['since'] >= 6 or force_c is not None): shift_bperm(e)
            elif e['stage'] == 1 and (nm[0] - e['since'] >= 6 or force_c is not None):
                shift_fin(e); pend.remove(e)
            if force_c is not None and e['c'] == force_c and e in pend:
                if e['stage'] == 0: shift_bperm(e)
                shift_fin(e); pend.remove(e)
            if e in pend and force_c is None: break
            if force_c is not None and e['c'] == force_c: break
    nbl = 0
    for i in range(2): loadB(i)
    nbl = 2
    for i, (gi, ph, mu, cs) in enumerate(items):
        cs = [c for c in cs if not any(e['c'] == c for e in pend)] + [c for c in cs if any(e['c'] == c for e in pend)]
        if nbl <= i: loadB(nbl); nbl += 1
        for c in cs:
            m = 2 * c - mu
            while m not in atag:
                if q.n - q.done > 12: q.wait(q.n - 8)
                loadA(apend.pop(0))
            k = 0
            while apend and first_use[apend[0]] <= i + 12 and (q.n - q.done) <= 11 and k < 2:
                loadA(apend.pop(0)); k += 1
            if any(e['c'] == c for e in pend): progress(force_c=c)
            q.wait(btag[i]); q.wait(atag[m])
            s = BR + 4 * (i % NB)
            cin = '0' if (ph == 3 and mu == -1) else f'v[{acc(c)}:{acc(c)+3}]'
            a(f'v_mfma_f32_16x16x32_bf16 v[{acc(c)}:{acc(c)+3}], v[{AF+4*m}:{AF+4*m+3}], v[{s}:{s+3}], {cin}')
            nm[0] += 1
            if mu == 2 * c and ph > 0: pend.append(dict(c=c, ph=ph, stage=0, since=nm[0], tag=None))
            progress()
            if nbl < min(i + NB, len(items)) and (q.n - q.done) <= 11:
                loadB(nbl); nbl += 1
        if (i + 1 == len(items)) or items[i + 1][0] != gi:
            assert not pend
            epilogue(gi, groups[gi], acc)

def gen():
    a = Asm(); st = St(a)
    a(f'{KN}:')
    a('s_cmp_ge_u32 s2, 256'); a('s_cbranch_scc1 KEND')
    st(0)
    a('s_load_dwordx4 s[4:7], s[0:1], 0')
    a('s_load_dwordx4 s[8:11], s[0:1], 16')
    a('s_load_dwordx4 s[12:15], s[0:1], 32')
    a('s_load_dwordx2 s[16:17], s[0:1], 48')
    a('s_load_dwordx4 s[20:23], s[0:1], 64')
    a('s_load_dwordx4 s[24:27], s[0:1], 80')
    a('s_load_dwordx4 s[72:75], s[0:1], 96')
    a('s_load_dwordx4 s[76:79], s[0:1], 112')
    a('s_load_dwordx2 s[28:29], s[0:1], 128')
    a('v_lshrrev_b32 v1, 6, v0'); a('v_and_b32 v2, 63, v0'); a('v_readfirstlane_b32 s48, v1')
    a('v_and_b32 v4, 15, v2'); a('v_lshrrev_b32 v5, 4, v2'); a('v_cvt_f32_u32 v3, v4')
    a('s_and_b32 s49, s48, 3'); a('s_lshr_b32 s50, s48, 2')
    a('s_and_b32 s51, s2, 15'); a('s_lshr_b32 s56, s2, 4')
    a('s_and_b32 s30, s2, 7'); a('s_lshl_b32 s30, s30, 5'); a('s_lshr_b32 s31, s2, 3'); a('s_add_u32 s30, s30, s31')
    a('s_lshl_b32 s30, s30, 2'); a('s_add_u32 s31, s30, s49')
    a('s_mov_b64 s[64:65], 1')
    a('v_lshlrev_b32 v6, 4, v2')
    a(f'v_mov_b32 v25, {CNT}'); a('v_mov_b32 v21, 1')
    VC, V1 = 25, 21
    for r in range(12, 16): a(f'v_mov_b32 v{r}, 0')
    a('s_cmp_eq_u32 s50, 2'); a('s_cbranch_scc1 ZH')
    a(f's_mul_i32 s67, s48, {REG}')
    a('v_lshrrev_b32 v10, 3, v2'); a('v_mul_u32_u24 v10, 1152, v10'); a('v_and_b32 v11, 7, v2')
    a('v_lshl_add_u32 v10, v11, 4, v10'); a(f'v_add_u32 v10, {QOFF}, v10')
    a('v_and_b32 v11, 1, v2'); a('v_lshlrev_b32 v11, 4, v11')
    a('v_cmp_gt_u32 vcc, 32, v2'); a('v_cndmask_b32 v10, v11, v10, vcc'); a('v_add_u32 v10, s67, v10')
    a('s_branch ZJ')
    a('ZH:')
    a('v_and_b32 v10, 7, v2'); a('v_lshlrev_b32 v10, 4, v10'); a(f'v_add_u32 v10, {CNT}, v10')
    a('ZJ:')
    a('ds_write_b128 v10, v[12:15]')
    a('s_waitcnt lgkmcnt(0)')
    a('s_barrier')
    srd(a, 44, 28, WS_SIZE)
    a('s_cmp_eq_u32 s50, 2'); a('s_cbranch_scc1 HELP')
    a('s_mov_b32 s52, 0x00010001'); a('s_mov_b32 s53, 0x00010001')
    a('s_mov_b32 s54, 0xff00ff00'); a('s_mov_b32 s55, 0xff00ff00')
    a('s_lshl_b32 s57, s31, 8'); a('s_lshl_b32 s58, s50, 7'); a('s_add_u32 s57, s57, s58')
    a('v_lshl_add_u32 v26, v2, 1, s57'); a('s_lshl_b32 s57, s31, 1'); a('v_mov_b32 v7, s57')
    a('global_load_ushort v10, v26, s[6:7]'); a('global_load_ushort v11, v26, s[8:9]')
    a('global_load_ushort v12, v26, s[10:11]'); a('global_load_ushort v13, v26, s[12:13]')
    a('global_load_ushort v14, v7, s[14:15]'); a('global_load_ushort v15, v7, s[16:17]')
    a('global_load_ushort v9, v7, s[72:73]')
    st(1)
    a('s_waitcnt vmcnt(1)')
    a(f's_mov_b32 s62, {LOG2E}'); a(f's_mov_b32 s63, {INV2PI}')
    for r in (10, 11, 12, 13, 14, 15): a(f'v_lshlrev_b32 v{r}, 16, v{r}')
    a('v_mul_f32 v14, s62, v14'); a('v_mul_f32 v10, s62, v10')
    a('v_exp_f32 v14, v14'); a('v_exp_f32 v10, v10')
    a('v_cvt_pk_bf16_f32 v14, v14, v14'); a('v_cvt_pk_bf16_f32 v10, v10, v10')
    a('v_lshlrev_b32 v14, 16, v14'); a('v_lshlrev_b32 v10, 16, v10')
    a('v_mul_f32 v28, v10, v14'); a('v_mul_f32 v29, v11, v14')
    a('v_mul_f32 v28, s62, v28'); a('v_sub_f32 v28, 0, v28'); a('v_mul_f32 v29, s63, v29')
    a('v_add_f32 v14, v14, v14'); a('v_mul_f32 v30, v12, v14'); a('v_mul_f32 v31, v13, v14')
    a(f's_mul_i32 s57, s48, 1280'); a(f's_add_u32 s57, s57, {PAR}')
    a('v_lshl_add_u32 v32, v2, 4, s57'); a('ds_write_b128 v32, v[28:31]')
    a('s_mov_b32 s58, 0x45000000')
    a('v_mul_f32 v34, s58, v28'); a('v_mul_f32 v35, s58, v29')
    a('v_exp_f32 v34, v34'); a('v_fract_f32 v35, v35'); a('v_cos_f32 v36, v35'); a('v_sin_f32 v37, v35')
    a('v_mul_f32 v36, v36, v34'); a('v_mul_f32 v37, v37, v34')
    a('v_mul_f32 v38, v31, v37'); a('v_mul_f32 v39, v31, v36')
    a('v_fma_f32 v38, v30, v36, -v38'); a('v_fma_f32 v39, -v30, v37, -v39')
    a('v_cvt_pk_bf16_f32 v38, v38, v39')
    a('s_add_u32 s57, s57, 1024'); a('v_lshl_add_u32 v33, v2, 2, s57'); a('ds_write_b32 v33, v38')
    a('s_sub_u32 s58, s57, 1024'); a('v_lshl_add_u32 v40, v5, 6, s58'); a('v_lshl_add_u32 v41, v5, 4, s57')
    a('s_waitcnt lgkmcnt(0)')
    KACC, KB = 48, 64
    kgen_step(a, 0, 40, KACC, KB)
    kgen_step(a, 1, 40, KACC, KB)
    a('s_cmp_eq_u32 s50, 0'); a('s_cbranch_scc1 NOSK')
    srd(a, 36, 26, 4 << 20)
    a('s_lshl_b32 s62, s31, 12')
    for i in range(4):
        a(f's_add_u32 m0, s67, {32 + i*1024}'); a(f's_add_u32 s63, s62, {i*1024}')
        a('buffer_load_dwordx4 v6, s[36:39], s63 offen lds')
    a('NOSK:')
    kgen_step(a, 2, 40, KACC, KB)
    kgen_step(a, 3, 40, KACC, KB)
    st(2)
    a(f's_lshl_b32 s57, s49, 12'); a(f's_add_u32 s57, s57, {PART}'); a('v_lshl_add_u32 v40, v2, 4, s57')
    a('s_cmp_eq_u32 s50, 0'); a('s_cbranch_scc1 AEXP')
    for b in range(4): a(f'ds_write_b128 v40, v[{KACC+4*b}:{KACC+4*b+3}] offset:{b*1024}')
    a('s_lshl_b32 s57, s49, 2'); a(f'v_add_u32 v41, s57, v{VC}')
    a('s_waitcnt lgkmcnt(0)')
    lds_inc(a, 41, V1, 72)
    a('s_waitcnt vmcnt(0)')
    a('s_add_u32 s57, s67, 32'); a('v_mov_b32 v10, s57')
    a('ds_read_u16 v11, v10'); a('s_waitcnt lgkmcnt(0)')
    a('v_lshlrev_b32 v11, 16, v11'); a('v_lshlrev_b32 v9, 16, v9'); a('v_add_f32 v11, v11, v9')
    a('v_cvt_pk_bf16_f32 v11, v11, v11'); a('ds_write_b16 v10, v11')
    a('s_branch CSET')
    a('AEXP:')
    a('s_lshl_b32 s57, s49, 2'); a(f'v_add_u32 v41, s57, v{VC}')
    lds_spin(a, 41, 42, 1, 72)
    for b in range(4): a(f'ds_read_b128 v[{64+4*b}:{64+4*b+3}], v40 offset:{b*1024}')
    a('s_waitcnt lgkmcnt(0)')
    for i in range(16): a(f'v_add_f32 v{KACC+i}, v{KACC+i}, v{64+i}')
    a('v_mov_b32 v84, 0'); a('v_cndmask_b32 v84, v84, v15, s[64:65]'); a(f'v_add_f32 v{KACC}, v{KACC}, v84')
    a('s_add_u32 s57, s67, 32'); a('v_mov_b32 v85, s57')
    gen_expand(a, KACC, 85, 88)
    a('CSET:')
    st(3)
    VA, VB, VIDX, VZERO, VT_, VX = 16, 17, 18, 19, 20, 22
    a('v_lshrrev_b32 v10, 2, v4'); a('v_and_b32 v11, 3, v2'); a('v_sub_u32 v11, v11, v10'); a('v_lshlrev_b32 v11, 3, v11')
    a('v_lshlrev_b32 v10, 6, v5'); a('v_sub_u32 v11, v11, v10'); a('s_add_u32 s59, s67, 224'); a(f'v_add_u32 v{VA}, s59, v11')
    a('v_lshlrev_b32 v10, 3, v4'); a('v_lshl_add_u32 v10, v5, 4, v10'); a(f's_add_u32 s59, s67, {QOFF + 8}'); a(f'v_add_u32 v{VB}, s59, v10')
    a('v_add_u32 v10, -1, v4'); a('v_and_b32 v10, 15, v10'); a('v_add_u32 v10, 48, v10')
    a('v_add_u32 v11, -16, v2'); a('v_cmp_gt_u32 vcc, 16, v2'); a('v_cndmask_b32 v10, v11, v10, vcc'); a(f'v_lshlrev_b32 v{VIDX}, 2, v10')
    a(f'v_mov_b32 v{VZERO}, 0')
    a(f's_mul_i32 s59, s49, {TS}'); a(f's_mul_i32 s60, s50, {4*TS}'); a('s_add_u32 s59, s59, s60'); a(f's_add_u32 s59, s59, {TA}')
    a('v_mul_u32_u24 v10, 40, v4'); a('v_lshl_add_u32 v10, v5, 3, v10'); a(f'v_add_u32 v{VT_}, s59, v10')
    a(f's_mul_i32 s59, s49, {REG}'); a(f's_add_u32 s59, s59, {QOFF + 128}')
    a('v_lshlrev_b32 v10, 3, v4'); a('v_lshl_add_u32 v10, v5, 1, v10'); a(f'v_add_u32 v{VX}, s59, v10')
    lds_spin(a, VC, 23, 4, C_Q)
    st(4)
    AF, CACC, BR, NB, TMP, XR = 32, 96, 112, 6, 136, 146
    a('s_cmp_eq_u32 s50, 0'); a('s_cbranch_scc0 CONVB')
    q = DSQ(a)
    def epiA(gi, grp, acc):
        q.waitall()
        for j, c in enumerate(grp):
            a(f'v_cvt_pk_bf16_f32 v{XR+2*j}, v{acc(c)}, v{acc(c)+1}'); a(f'v_cvt_pk_bf16_f32 v{XR+2*j+1}, v{acc(c)+2}, v{acc(c)+3}')
            a(f'ds_write_b64 v{VT_}, v[{XR+2*j}:{XR+2*j+1}] offset:{640*c}')
        a('s_waitcnt lgkmcnt(0)')
        lds_inc(a, VC, V1, C_A + 4*gi); q.n += 1
    conv(a, q, GROUPS, AF, CACC, BR, NB, TMP, VA, VB, VIDX, VZERO, epiA)
    st(5)
    a('s_branch KFIN')
    a('CONVB:')
    q2 = DSQ(a)
    def epiB(gi, grp, acc):
        for j, c in enumerate(grp):
            for ph in range(4): q2.issue(f'ds_read_u16_d16_hi v{XR+4*j+ph}, v{VX} offset:{ph*1152+128*c}')
            if j % 2 == 1: q2.wait(q2.n - 4)
        q2.waitall()
        for j, c in enumerate(grp):
            for i in range(4): a(f'v_and_b32 v{XR+4*j+i}, 0xffff0000, v{XR+4*j+i}')
            for i in range(4): a(f'v_mul_f32 v{XR+4*j+i}, v{XR+4*j+i}, v{acc(c)+i}')
            a(f'v_cvt_pk_bf16_f32 v{XR+4*j}, v{XR+4*j}, v{XR+4*j+1}'); a(f'v_cvt_pk_bf16_f32 v{XR+4*j+1}, v{XR+4*j+2}, v{XR+4*j+3}')
            a(f'ds_write_b64 v{VT_}, v[{XR+4*j}:{XR+4*j+1}] offset:{640*c}')
        a('s_waitcnt lgkmcnt(0)')
        lds_inc(a, VC, V1, C_B + 4*gi); q2.n += 1
    conv(a, q2, GROUPS, AF, CACC, BR, NB, TMP, VA, VB, VIDX, VZERO, epiB)
    st(5)
    a('s_branch KFIN')
    a('HELP:')
    a('s_setprio 2')
    srd(a, 32, 4, 4 << 20); srd(a, 36, 20, 4 << 20); srd(a, 40, 22, 4 << 20)
    a('v_lshrrev_b32 v34, 3, v2'); a('v_and_b32 v35, 7, v2')
    a('v_and_b32 v36, 1, v5'); a('v_lshlrev_b32 v36, 1, v36')
    a('s_and_b32 s57, s49, 1'); a('s_lshl_b32 s57, s57, 2')
    a('v_or_b32 v37, s57, v36'); a('v_xor_b32 v37, v37, v35'); a('v_lshlrev_b32 v37, 4, v37'); a('v_lshl_add_u32 v37, v34, 11, v37')
    a('s_lshl_b32 s57, s56, 18'); a('s_lshl_b32 s58, s49, 16'); a('s_add_u32 s57, s57, s58')
    a('s_lshl_b32 s58, s51, 7'); a('s_add_u32 s60, s57, s58')
    a('s_lshl_b32 s61, s49, 12')
    a('v_lshrrev_b32 v38, 5, v2'); a('v_lshlrev_b32 v38, 1, v38')
    for hb in range(2):
        a(f'v_or_b32 v39, {4*hb}, v38'); a('v_xor_b32 v39, v39, v35'); a('v_lshlrev_b32 v39, 4, v39'); a(f'v_lshl_add_u32 v{40+hb}, v34, 11, v39')
    for i in range(4):
        a(f's_add_u32 s57, s60, {i*8*2048}'); a(f's_add_u32 m0, s61, {XT + i*1024}')
        a(f'buffer_load_dwordx4 v{40+(i&1)}, s[32:35], s57 offen lds')
    for i in range(4):
        a(f's_add_u32 s57, s60, {i*8*2048}'); a(f's_sub_u32 s57, s57, {4*2048}'); a('v_add_u32 v42, s57, v37')
        a(f's_add_u32 m0, s61, {KT + i*1024}'); a('buffer_load_dwordx4 v42, s[36:39], 0 offen lds')
        a(f's_add_u32 s57, s60, {i*8*2048}'); a(f's_add_u32 m0, s61, {VT + i*1024}')
        a('buffer_load_dwordx4 v37, s[40:43], s57 offen lds')
    a('s_cmp_lg_u32 s49, 3'); a('s_cbranch_scc1 NOX')
    a('v_xor_b32 v42, v36, v35'); a('v_lshlrev_b32 v42, 4, v42'); a('v_lshl_add_u32 v42, v34, 11, v42')
    a('s_lshl_b32 s57, s56, 18'); a(f's_add_u32 s57, s57, {124*2048}'); a('s_lshl_b32 s58, s51, 7'); a('s_add_u32 s57, s57, s58')
    a('v_add_u32 v42, s57, v42'); a(f's_mov_b32 m0, {KT + 128*128}'); a('s_nop 0')
    a('buffer_load_dwordx4 v42, s[36:39], 0 offen lds')
    a('NOX:')
    a('s_lshl_b32 s57, s51, 9'); a('s_lshl_b32 s58, s49, 7'); a('s_add_u32 s57, s57, s58'); a('v_lshl_add_u32 v43, v4, 3, s57')
    a('global_load_dwordx2 v[32:33], v43, s[24:25]')
    st(1)
    srd(a, 40, 78, 256)
    a('v_mov_b32 v46, 0')
    a('s_cmp_lg_u32 s49, 0'); a('s_cbranch_scc1 NON2')
    a('s_cmp_lg_u32 s2, 0'); a('s_cbranch_scc1 NONW')
    a('s_memrealtime s[68:69]'); a('s_waitcnt lgkmcnt(0)'); a('s_or_b32 s68, s68, 1')
    a('v_mov_b32 v54, s68'); a('v_mov_b32 v55, s69'); a('s_mov_b64 exec, 1')
    a('buffer_store_dwordx2 v[54:55], v46, s[40:43], 0 offen sc1'); a('s_mov_b64 exec, -1')
    a('NONW:')
    a(f's_mov_b32 s71, {SPIN_MAX}')
    a('NONL:')
    a('buffer_load_dwordx2 v[62:63], v46, s[40:43], 0 offen sc1')
    a('s_waitcnt vmcnt(0)')
    a('v_readfirstlane_b32 s68, v62')
    a('s_cmp_lg_u32 s68, 0'); a('s_cbranch_scc1 NONOK')
    a('s_sub_u32 s71, s71, 1'); a('s_cmp_eq_u32 s71, 0'); a('s_cbranch_scc1 NONOK')
    a('s_sleep 2'); a('s_branch NONL')
    a('NONOK:')
    a(f'ds_write_b64 v{VC}, v[62:63] offset:{C_NON}')
    a('NON2:')
    a('s_waitcnt vmcnt(0) lgkmcnt(0)')
    lds_inc(a, VC, V1, C_T)
    a('v_lshrrev_b32 v46, 2, v4'); a('v_and_b32 v47, 3, v2'); a('v_lshrrev_b32 v48, 1, v47')
    a('s_lshl_b32 s57, s49, 1'); a('v_add_u32 v48, s57, v48')
    a('v_lshlrev_b32 v49, 1, v46'); a('v_xor_b32 v49, v48, v49'); a('v_lshlrev_b32 v49, 4, v49')
    a('v_and_b32 v50, 1, v47'); a('v_lshlrev_b32 v50, 3, v50')
    a('v_add_u32 v49, v49, v50'); a('v_lshl_add_u32 v49, v46, 9, v49'); a('v_lshl_add_u32 v49, v5, 12, v49'); a(f'v_add_u32 v49, {XT}, v49')
    a('v_lshrrev_b32 v51, 1, v46'); a('v_lshlrev_b32 v51, 1, v51'); a('v_and_b32 v52, 1, v5'); a('v_lshl_or_b32 v51, v52, 2, v51')
    a('v_xor_b32 v52, v48, v51'); a('v_xor_b32 v53, 4, v52')
    a('v_lshl_add_u32 v50, v46, 7, v50'); a('v_lshl_add_u32 v50, v5, 12, v50'); a(f'v_add_u32 v50, {VT}, v50')
    a('v_lshl_add_u32 v52, v52, 4, v50'); a('v_lshl_add_u32 v53, v53, 4, v50')
    a('s_lshl_b32 s57, s51, 18'); a('s_lshl_b32 s58, s49, 16'); a('s_add_u32 s57, s57, s58'); a('s_lshl_b32 s58, s56, 6'); a('s_add_u32 s57, s57, s58')
    a('v_lshlrev_b32 v54, 12, v4'); a('v_lshl_add_u32 v54, v5, 4, v54'); a('v_add_u32 v54, s57, v54')
    a('v_lshlrev_b32 v56, 16, v32'); a('v_and_b32 v57, 0xffff0000, v32'); a('v_lshlrev_b32 v58, 16, v33'); a('v_and_b32 v59, 0xffff0000, v33')
    lds_spin(a, VC, 23, 4, C_T)
    st(2)
    U, KD, VD, KF, KV = 64, 80, 98, 114, 26
    KV = 132 - 0
    for ph in range(4):
        for h in range(2): a(f'ds_read_b64_tr_b16 v[{U+4*ph+2*h}:{U+4*ph+2*h+1}], v49 offset:{(16*h+ph)*128}')
    for h in range(8): a(f'ds_read_b64_tr_b16 v[{KD+2*h}:{KD+2*h+1}], v52 offset:{KT - VT + 512*h}')
    a('s_waitcnt lgkmcnt(8)')
    for ph in range(4):
        a(f's_mov_b32 s58, {WS_QU + ph*1024}')
        a(f'buffer_store_dwordx4 v[{U+4*ph}:{U+4*ph+3}], v54, s[44:47], s58 offen sc1')
    a(f'ds_read_b64_tr_b16 v[{KD+16}:{KD+17}], v53 offset:{KT - VT + 512*8}')
    for h in range(8): a(f'ds_read_b64_tr_b16 v[{VD+2*h}:{VD+2*h+1}], v52 offset:{512*h}')
    a('s_waitcnt lgkmcnt(8)')
    for d in range(18):
        a(f'v_lshlrev_b32 v{KF+2*d}, 16, v{KD+d}'); a(f'v_and_b32 v{KF+2*d+1}, 0xffff0000, v{KD+d}')
    for hh in range(2):
        KV = 150
        ts = [4*y + 2*hh + p2 for p2 in range(2) for y in range(8)]
        for i, t in enumerate(ts): a(f'v_mul_f32 v{KV+i}, v56, v{KF+t+4}')
        for i, t in enumerate(ts): a(f'v_fmac_f32 v{KV+i}, v57, v{KF+t+3}')
        for i, t in enumerate(ts): a(f'v_fmac_f32 v{KV+i}, v58, v{KF+t+2}')
        for i, t in enumerate(ts): a(f'v_fmac_f32 v{KV+i}, v59, v{KF+t+1}')
        if hh == 0: a('s_waitcnt lgkmcnt(0)')
        for i, t in enumerate(ts):
            d = VD + 2*(t//4) + hh
            if t & 1: a(f'v_and_b32 v{26+(i%4)}, 0xffff0000, v{d}')
            else: a(f'v_lshlrev_b32 v{26+(i%4)}, 16, v{d}')
            a(f'v_mul_f32 v{KV+i}, v{KV+i}, v{26+(i%4)}')
        for p2 in range(2):
            O = 80 + 8*hh + 4*p2
            for jj in range(4): a(f'v_cvt_pk_bf16_f32 v{O+jj}, v{KV+8*p2+2*jj}, v{KV+8*p2+2*jj+1}')
            a(f's_mov_b32 s58, {WS_QKV + (2*hh+p2)*1024}')
            a(f'buffer_store_dwordx4 v[{O}:{O+3}], v54, s[44:47], s58 offen sc1')
    st(3)
    a('v_lshlrev_b32 v8, 5, v2')
    a('s_lshl_b32 s57, s2, 3'); a('s_lshl_b32 s58, s49, 1'); a('s_add_u32 s59, s57, s58'); a('s_lshl_b32 s57, s59, 11'); a('v_add_u32 v9, s57, v8')
    a('global_load_dwordx4 v[96:99], v9, s[4:5]'); a('global_load_dwordx4 v[100:103], v9, s[4:5] offset:16')
    a('global_load_dwordx4 v[104:107], v9, s[4:5] offset:2048'); a('global_load_dwordx4 v[108:111], v9, s[4:5] offset:2064')
    a('global_load_dwordx4 v[112:115], v8, s[74:75]'); a('global_load_dwordx4 v[116:119], v8, s[74:75] offset:16')
    a(f'ds_read_b64 v[62:63], v{VC} offset:{C_NON}')
    a('s_waitcnt vmcnt(6)')
    a('s_mov_b64 exec, 1')
    a(f'ds_add_rtn_u32 v48, v{VC}, v{V1} offset:{C_PUB}')
    a('s_waitcnt lgkmcnt(0)')
    a('v_readfirstlane_b32 s57, v48')
    a('s_cmp_eq_u32 s57, 3'); a('s_cbranch_scc0 NOFLAG')
    a('s_lshl_b32 s57, s51, 7'); a('s_lshl_b32 s58, s56, 3'); a('s_add_u32 s57, s57, s58'); a(f's_add_u32 s57, s57, {WS_F1}')
    a('v_mov_b32 v48, 0')
    a('buffer_store_dwordx2 v[62:63], v48, s[44:47], s57 offen sc1')
    a('NOFLAG:')
    a('s_mov_b64 exec, -1')
    st(4)
    a('s_waitcnt vmcnt(1)')
    for rr in range(2): a(f'v_mov_b32 v{120+rr}, 0'); a(f'v_mov_b32 v{122+rr}, 0')
    for i in range(4):
        for rr in range(2):
            a(f'v_dot2c_f32_bf16 v{120+rr}, v{96+8*rr+i}, v{112+i}'); a(f'v_dot2c_f32_bf16 v{122+rr}, v{100+8*rr+i}, v{116+i}')
    a('s_nop 3')
    for rr in range(2): a(f'v_add_f32 v{120+rr}, v{120+rr}, v{122+rr}')
    for sh in (1, 2, 4, 8):
        for rr in range(2): a(f'v_add_f32_dpp v{120+rr}, v{120+rr}, v{120+rr} row_shr:{sh} row_mask:0xf bank_mask:0xf bound_ctrl:0')
    for rr in range(2): a(f'v_add_f32_dpp v{120+rr}, v{120+rr}, v{120+rr} row_bcast:15 row_mask:0xa bank_mask:0xf')
    for rr in range(2): a(f'v_add_f32_dpp v{120+rr}, v{120+rr}, v{120+rr} row_bcast:31 row_mask:0xc bank_mask:0xf')
    a('v_readlane_b32 s57, v120, 63'); a('v_readlane_b32 s58, v121, 63')
    a('v_mov_b32 v120, s57'); a('v_mov_b32 v121, s58'); a('v_cndmask_b32 v120, v121, v120, s[64:65]')
    a('v_cvt_pk_bf16_f32 v120, v120, v120'); a('v_lshlrev_b32 v120, 16, v120')
    a(f's_mov_b32 s62, {LOG2E}'); a('v_mul_f32 v120, s62, v120'); a('v_sub_f32 v120, 0, v120')
    a('v_exp_f32 v120, v120'); a('v_add_f32 v120, 1.0, v120'); a('v_rcp_f32 v120, v120')
    a('v_cvt_pk_bf16_f32 v120, v120, v120'); a('v_lshlrev_b32 v120, 16, v120')
    a('v_sub_f32 v121, 1.0, v120'); a('v_cvt_pk_bf16_f32 v120, v120, v121')
    a('s_lshl_b32 s57, s59, 2'); a(f's_add_u32 s57, s57, {WS_G}'); a('v_lshlrev_b32 v121, 2, v2')
    a('s_mov_b64 exec, 3'); a('buffer_store_dword v120, v121, s[44:47], s57 offen sc1'); a('s_mov_b64 exec, -1')
    a('s_cmp_lg_u32 s49, 0'); a('s_cbranch_scc1 POLLO')
    a('s_lshr_b32 s57, s30, 6'); a('s_lshl_b32 s57, s57, 7'); a(f's_add_u32 s57, s57, {WS_F1}')
    a('v_lshlrev_b32 v10, 3, v2'); a(f's_mov_b32 s71, {SPIN_MAX}'); a('s_mov_b64 exec, 0xffff')
    a('POLL:')
    a('buffer_load_dwordx2 v[12:13], v10, s[44:47], s57 offen sc1')
    a('s_waitcnt vmcnt(0)')
    a('v_xor_b32 v12, v12, v62'); a('v_xor_b32 v13, v13, v63'); a('v_or_b32 v12, v12, v13'); a('v_cmp_ne_u32 vcc, 0, v12')
    a('s_cmp_eq_u64 vcc, 0'); a('s_cbranch_scc1 POLLD')
    a('s_sub_u32 s71, s71, 1'); a('s_cmp_eq_u32 s71, 0'); a('s_cbranch_scc1 POLLD')
    a('s_sleep 1'); a('s_branch POLL')
    a('POLLD:')
    a('s_mov_b64 exec, -1')
    lds_inc(a, VC, V1, C_F1)
    a('s_branch POLLE')
    a('POLLO:')
    lds_spin(a, VC, 23, 1, C_F1)
    a('POLLE:')
    st(5)
    QR = 64
    a('s_lshl_b32 s58, s31, 12')
    for t in range(2):
        for ph in range(4):
            a(f's_add_u32 s59, s58, {(WS_QU, WS_QKV)[t] + ph*1024}')
            a(f'buffer_load_dwordx4 v[{QR+16*t+4*ph}:{QR+16*t+4*ph+3}], v6, s[44:47], s59 offen sc1')
    a(f's_mul_i32 s59, s49, {REG}'); a(f's_add_u32 s59, s59, {QOFF + 128}'); a('v_add_u32 v11, s59, v6')
    a(f'v_add_u32 v10, {4*REG}, v11')
    for t in range(2):
        a(f's_waitcnt vmcnt({4*(1-t)})')
        for ph in range(4): a(f'ds_write_b128 v{11-t}, v[{QR+16*t+4*ph}:{QR+16*t+4*ph+3}] offset:{ph*1152}')
    a('s_waitcnt lgkmcnt(0)')
    lds_inc(a, VC, V1, C_Q)
    st(6)
    a('s_mov_b64 exec, 1')
    a(f'ds_add_rtn_u32 v48, v{VC}, v{V1} offset:{C_PUB2}')
    a('s_waitcnt lgkmcnt(0)')
    a('v_readfirstlane_b32 s57, v48')
    a('s_cmp_eq_u32 s57, 3'); a('s_cbranch_scc0 NOF2')
    a('s_lshl_b32 s57, s2, 3'); a(f's_add_u32 s57, s57, {WS_F2}'); a('v_mov_b32 v48, 0')
    a('buffer_store_dwordx2 v[62:63], v48, s[44:47], s57 offen sc1')
    a('NOF2:')
    a('s_mov_b64 exec, -1')
    a('s_cmp_lg_u32 s49, 0'); a('s_cbranch_scc1 PAO')
    a(f's_mov_b32 s71, {SPIN_MAX}')
    a('PA:')
    a(f's_mov_b32 s57, {WS_F2}')
    a('buffer_load_dwordx4 v[64:67], v6, s[44:47], s57 offen sc1')
    a('buffer_load_dwordx4 v[68:71], v6, s[44:47], s57 offen offset:1024 sc1')
    a('s_waitcnt vmcnt(0)')
    for i in range(8): a(f'v_xor_b32 v{64+i}, v{64+i}, v{62+(i&1)}')
    for i in range(1, 8): a(f'v_or_b32 v64, v64, v{64+i}')
    a('v_cmp_ne_u32 vcc, 0, v64')
    a('s_cmp_eq_u64 vcc, 0'); a('s_cbranch_scc1 PAD')
    a('s_sub_u32 s71, s71, 1'); a('s_cmp_eq_u32 s71, 0'); a('s_cbranch_scc1 PAD')
    a('s_sleep 8'); a('s_branch PA')
    a('PAD:')
    lds_inc(a, VC, V1, C_F2)
    a('s_branch PAE')
    a('PAO:')
    lds_spin(a, VC, 23, 1, C_F2)
    a('PAE:')
    st(7)
    srd(a, 36, 76, 4 << 20)
    a('s_lshl_b32 s57, s49, 8'); a('v_lshl_add_u32 v49, v2, 2, s57')
    for c in range(8):
        a(f's_mov_b32 s59, {WS_G + 1024*c}'); a(f'buffer_load_dword v{96+c}, v49, s[44:47], s59 offen sc1')
    VF, VO = 50, 51
    a('v_lshrrev_b32 v10, 2, v4'); a(f'v_mul_u32_u24 v10, {TS}, v10'); a('v_and_b32 v11, 3, v2'); a('v_lshl_add_u32 v10, v11, 3, v10')
    a('v_mul_u32_u24 v11, 40, v5'); a('v_add_u32 v10, v10, v11')
    a('s_mul_i32 s59, s49, 160'); a(f's_add_u32 s59, s59, {TA}'); a(f'v_add_u32 v{VF}, s59, v10')
    a('s_lshl_b32 s59, s49, 17'); a('s_lshl_b32 s60, s30, 1'); a('s_add_u32 s59, s59, s60')
    a(f'v_lshlrev_b32 v10, 11, v2'); a(f'v_add_u32 v{VO}, s59, v10')
    a('s_waitcnt vmcnt(0)')
    F = 64
    for gi, g2 in enumerate(GROUPS):
        lds_spin(a, VC, 23, 4, C_A + 4*gi)
        lds_spin(a, VC, 23, 4, C_B + 4*gi)
        c0 = min(g2); npass = len(g2)
        for p in range(npass):
            off = 640 * (c0 + p)
            a(f'ds_read_b64_tr_b16 v[{F+4*p}:{F+4*p+1}], v{VF} offset:{off}')
            a(f'ds_read_b64_tr_b16 v[{F+4*p+2}:{F+4*p+3}], v{VF} offset:{off + 4*TS}')
        for p in range(npass):
            a(f's_waitcnt lgkmcnt({2*(npass-1-p)})')
            A0, A1, B0, B1 = F+4*p, F+4*p+1, F+4*p+2, F+4*p+3
            G = 96 + c0 + p
            a(f'v_lshlrev_b32 v34, 16, v{G}'); a(f'v_and_b32 v35, 0xffff0000, v{G}')
            a(f'v_lshlrev_b32 v26, 16, v{A0}'); a(f'v_and_b32 v27, 0xffff0000, v{A0}')
            a(f'v_lshlrev_b32 v28, 16, v{A1}'); a(f'v_and_b32 v29, 0xffff0000, v{A1}')
            a(f'v_lshlrev_b32 v30, 16, v{B0}'); a(f'v_and_b32 v31, 0xffff0000, v{B0}')
            a(f'v_lshlrev_b32 v32, 16, v{B1}'); a(f'v_and_b32 v33, 0xffff0000, v{B1}')
            for i in range(4): a(f'v_mul_f32 v{26+i}, v{26+i}, v34')
            for i in range(4): a(f'v_fmac_f32 v{26+i}, v{30+i}, v35')
            a(f'v_cvt_pk_bf16_f32 v{A0}, v26, v27'); a(f'v_cvt_pk_bf16_f32 v{A1}, v28, v29')
            a(f's_mov_b32 s59, {256*(c0+p) * 2048}')
            a(f'buffer_store_dwordx2 v[{A0}:{A1}], v{VO}, s[36:39], s59 offen')
        F = 80 if F == 64 else 64
        if gi == 0: st(8)
    st(9)
    a('KFIN:')
    st(10); st.dump(11)
    a('KEND:')
    a('s_endpgm')
    return a, 168, LDS

def build(path):
    hdr = open('cdna_kernels/' + NAME + '.s.ref').read().split('\n')
    head = [l for l in hdr[:18] if l.startswith(';') and '@launch' not in l and 'Override' not in l and 'grid=ceil' not in l]
    k, nv, lds = gen()
    out = head[:]
    out.append(f'; @launch grid=(256,1,1) block=(768,1,1) lds={lds}')
    out.append('.amdgcn_target "amdgcn-amd-amdhsa--gfx950"'); out.append('.text')
    out.append(f'.globl {KN}'); out.append('.p2align 8'); out.append(f'.type {KN},@function')
    lines, nn = k.finalize(); print('instrs', len(lines), 'nops', nn)
    out += lines
    out.append('.section .rodata,"a"'); out.append(kd(KN, nv))
    open(path, 'w').write('\n'.join(out) + '\n')

if __name__ == '__main__':
    if len(sys.argv) > 2:
        gen1.STAMPS = True
        if sys.argv[2] == 'c': gen1.STAMPOP = 's_memtime'
    build(sys.argv[1])
```

```python
import sys
import gen1
from asmlib import Asm
from gen1 import srd, LOG2E, INV2PI, NAME, gen_expand, WS_QU, WS_QKV, WS_G
from gen2 import DSQ, kd
from gen4 import kgen_step, lds_spin, SPIN_MAX

WS_F1 = (12 << 20) + 8192
WS_F2 = WS_F1 + 4096
WS_SIZE = WS_F2 + 2048
WS_DBG = 13 << 20
REG = 8736; QOFF = 4128
CNT = 8 * REG
XT = CNT + 128
VT = XT + 16384
KT = VT + 16384
PAR = KT + 17408
PART = PAR + 10240
LDS = PART + 16384 + 16384
TS = 5184
TA = XT; TB = XT + 4 * TS
KN = 'gated_mix__ssm_conv_s4d__ssm_conv_h3__prompt_kernel'
import os
GROUPS = eval(os.environ.get('GRP', '((0,1,2,3),(4,5,6,7))'))
NBR = int(os.environ.get('NB', '6'))
C_TKV, C_TX, C_PKV, C_PU, C_FKV, C_FU, C_QB, C_QA, C_PG, C_F2, C_A, C_B, C_PART = 0, 4, 8, 12, 16, 20, 24, 28, 32, 36, 40, 56, 72

DIAG = os.environ.get('DIAG')
class St:
    def __init__(self, a): self.a = a; self.h = False
    def d(self, n):
        if DIAG and gen1.STAMPS: self.a(f'{gen1.STAMPOP} s[{80+2*n}:{81+2*n}]')
    def __call__(self, n):
        if DIAG and self.h and 5 <= n <= 9: return
        if gen1.STAMPS: self.a(f'{gen1.STAMPOP} s[{80+2*n}:{81+2*n}]')
    def dump(self, n):
        if not gen1.STAMPS: return
        a = self.a
        a('s_waitcnt vmcnt(0) lgkmcnt(0)')
        a('s_mul_i32 s66, s2, 12'); a('s_add_u32 s66, s66, s48'); a('s_lshl_b32 s66, s66, 7'); a(f's_add_u32 s66, s66, {WS_DBG}')
        a('v_mov_b32 v1, s66'); a('s_mov_b64 exec, 1')
        for i in range(n):
            a(f'v_mov_b32 v2, s{80+2*i}'); a(f'v_mov_b32 v3, s{81+2*i}')
            a(f'global_store_dwordx2 v1, v[2:3], s[28:29] offset:{8*i}')
        a('s_mov_b64 exec, -1')

def lds_inc(a, VC, V1, off):
    a('s_mov_b64 exec, 1'); a(f'ds_add_u32 v{VC}, v{V1} offset:{off}'); a('s_mov_b64 exec, -1')

def conv(a, q, groups, AF, ACC, BR, NB, TMP, VA, VB, VIDX, VZERO, epilogue, pre):
    items = []
    for gi, grp in enumerate(groups):
        for ph in (3, 2, 1, 0):
            for mu in range(-1, 2 * max(grp) + 1):
                items.append((gi, ph, mu, [c for c in grp if mu <= 2 * c]))
    c0of = {}
    for grp in groups:
        for c in grp: c0of[c] = min(grp)
    def acc(c): return ACC + 4 * (c - c0of[c])
    btag = {}; atag = {}
    def loadB(i):
        gi, ph, mu, _ = items[i]
        if os.environ.get('NOB') and i >= NB:
            btag[i] = 0; return
        s = BR + 4 * (i % NB); off = ph * 1152 + 64 * (mu + 1)
        q.issue(f'ds_read_b64 v[{s}:{s+1}], v{VB} offset:{off}')
        btag[i] = q.issue(f'ds_read_b64 v[{s+2}:{s+3}], v{VB} offset:{off+8}')
    def loadA(m):
        r = AF + 4 * m
        q.issue(f'ds_read_b64_tr_b16 v[{r}:{r+1}], v{VA} offset:{256*m+32}')
        atag[m] = q.issue(f'ds_read_b64_tr_b16 v[{r+2}:{r+3}], v{VA} offset:{256*m}')
    aorder = []
    for gi, ph, mu, cs in items:
        for c in cs:
            m = 2 * c - mu
            if m not in aorder: aorder.append(m)
    first_use = {}
    for i, (gi, ph, mu, cs) in enumerate(items):
        for c in cs: first_use.setdefault(2 * c - mu, i)
    apend = list(aorder)
    def tmpreg(c, ph):
        for gi, grp in enumerate(groups):
            if c == max(grp) and gi < len(groups) - 1: return TMP + 4 + 3 * gi + (ph - 1)
        return TMP + (c - c0of[c])
    pend = []; nm = [0]
    def shift_bperm(e):
        c, ph = e['c'], e['ph']
        e['tag'] = q.issue(f'ds_bpermute_b32 v{tmpreg(c,ph)}, v{VIDX}, v{acc(c)+3}')
        e['stage'] = 1; e['since'] = nm[0]
    def shift_fin(e):
        c, ph = e['c'], e['ph']
        q.wait(e['tag'])
        r = acc(c)
        prev = f'v{tmpreg(c-1,ph)}' if c > 0 else f'v{VZERO}'
        a(f'v_mov_b32 v{r+3}, v{r+2}'); a(f'v_mov_b32 v{r+2}, v{r+1}'); a(f'v_mov_b32 v{r+1}, v{r}')
        a(f'v_cndmask_b32 v{r}, v{tmpreg(c,ph)}, {prev}, s[64:65]')
        e['stage'] = 2
    def progress(force_c=None):
        for e in list(pend):
            if e['stage'] == 0 and (nm[0] - e['since'] >= 6 or force_c is not None): shift_bperm(e)
            elif e['stage'] == 1 and (nm[0] - e['since'] >= 6 or force_c is not None):
                shift_fin(e); pend.remove(e)
            if force_c is not None and e['c'] == force_c and e in pend:
                if e['stage'] == 0: shift_bperm(e)
                shift_fin(e); pend.remove(e)
            if e in pend and force_c is None: break
            if force_c is not None and e['c'] == force_c: break
    a('s_waitcnt lgkmcnt(0)')
    while apend:
        loadA(apend.pop(0))
        if q.n - q.done > 12: q.wait(q.n - 8)
    q.waitall()
    pre()
    nbl = 0
    for i in range(2): loadB(i)
    nbl = 2
    for i, (gi, ph, mu, cs) in enumerate(items):
        cs = [c for c in cs if not any(e['c'] == c for e in pend)] + [c for c in cs if any(e['c'] == c for e in pend)]
        if nbl <= i: loadB(nbl); nbl += 1
        for c in cs:
            m = 2 * c - mu
            while m not in atag:
                if q.n - q.done > 12: q.wait(q.n - 8)
                loadA(apend.pop(0))
            k = 0
            while apend and first_use[apend[0]] <= i + 12 and (q.n - q.done) <= 11 and k < 2:
                loadA(apend.pop(0)); k += 1
            if any(e['c'] == c for e in pend): progress(force_c=c)
            q.wait(btag[i]); q.wait(atag[m])
            s = BR + 4 * (i % NB)
            cin = '0' if (ph == 3 and mu == -1) else f'v[{acc(c)}:{acc(c)+3}]'
            a(f'v_mfma_f32_16x16x32_bf16 v[{acc(c)}:{acc(c)+3}], v[{AF+4*m}:{AF+4*m+3}], v[{s}:{s+3}], {cin}')
            nm[0] += 1
            if mu == 2 * c and ph > 0 and not os.environ.get('NOSHIFT'): pend.append(dict(c=c, ph=ph, stage=0, since=nm[0], tag=None))
            progress()
            if nbl < min(i + NB, len(items)) and (q.n - q.done) <= 11:
                loadB(nbl); nbl += 1
        if (i + 1 == len(items)) or items[i + 1][0] != gi:
            assert not pend
            epilogue(gi, groups[gi], acc)


def kgen_loop(a, PARB, acc, base, mid):
    P = base; Z = base + 20; X = base + 28; T = base + 36; Y = base + 44; XB = base + 60
    E = range(4)
    def z(e): return f'v[{Z+2*e}:{Z+2*e+1}]'
    def x(e): return f'v[{X+2*e}:{X+2*e+1}]'
    def t(e): return f'v[{T+2*e}:{T+2*e+1}]'
    def rd():
        for e in E: a(f'ds_read_b128 v[{P+4*e}:{P+4*e+3}], v{PARB} offset:{e*16}')
        a(f'ds_read_b128 v[{P+16}:{P+19}], v{PARB+1}')
    for i in range(16): a(f'v_mov_b32 v{acc+i}, 0')
    rd()
    a('s_mov_b32 s69, 0')
    a('KGL:')
    a(f'v_add_u32 v{PARB}, 256, v{PARB}'); a(f'v_add_u32 v{PARB+1}, 64, v{PARB+1}')
    a('s_waitcnt lgkmcnt(0)')
    for e in E: a(f'v_pk_mul_f32 {t(e)}, v[{P+4*e}:{P+4*e+1}], v[46:47]')
    for e in E: a(f'v_exp_f32 v{T+2*e}, v{T+2*e}')
    for e in E: a(f'v_fract_f32 v{T+2*e+1}, v{T+2*e+1}')
    for e in E: a(f'v_cos_f32 v{Z+2*e}, v{T+2*e+1}')
    for e in E: a(f'v_sin_f32 v{Z+2*e+1}, v{T+2*e+1}')
    for e in E: a(f'v_pk_mul_f32 {z(e)}, {z(e)}, {t(e)} op_sel:[0,0] op_sel_hi:[1,0]')
    def sqall():
        for e in E: a(f'v_pk_mul_f32 {t(e)}, {z(e)}, {z(e)} op_sel:[0,0] op_sel_hi:[0,1]')
        for e in E: a(f'v_pk_fma_f32 {z(e)}, {z(e)}, {z(e)}, {t(e)} op_sel:[1,1,0] op_sel_hi:[0,1,1] neg_lo:[1,0,0]')
    for b in range(4):
        for e in E: a(f'v_cvt_pk_bf16_f32 v{Y+4*b+e}, v{Z+2*e}, v{Z+2*e+1}')
        sqall()
    for e in E: a(f'v_pk_mul_f32 {t(e)}, v[{P+4*e+2}:{P+4*e+3}], {z(e)} op_sel:[1,1] op_sel_hi:[1,0]')
    for e in E: a(f'v_pk_fma_f32 {x(e)}, v[{P+4*e+2}:{P+4*e+3}], {z(e)}, {t(e)} op_sel:[0,0,0] op_sel_hi:[0,1,1] neg_lo:[0,0,1] neg_hi:[1,0,1]')
    for e in E: a(f'v_cvt_pk_bf16_f32 v{XB+e}, v{X+2*e}, v{X+2*e+1}')
    for b in range(1, 4):
        for e in E: a(f'v_pk_mul_f32 {t(e)}, {x(e)}, {z(e)} op_sel:[0,0] op_sel_hi:[1,0]')
        for e in E: a(f'v_pk_fma_f32 {x(e)}, {x(e)}, {z(e)}, {t(e)} op_sel:[1,1,0] op_sel_hi:[0,1,1] neg_hi:[1,0,0]')
        for e in E: a(f'v_cvt_pk_bf16_f32 v{XB+4*b+e}, v{X+2*e}, v{X+2*e+1}')
        if b < 3: sqall()
    for e in E: a(f'v_cndmask_b32 v{XB+12+e}, v{XB+12+e}, v{P+16+e}, s[52:53]')
    rd()
    for b in range(4):
        a(f'v_mfma_f32_16x16x32_bf16 v[{acc+4*b}:{acc+4*b+3}], v[{Y+4*b}:{Y+4*b+3}], v[{XB+4*b}:{XB+4*b+3}], v[{acc+4*b}:{acc+4*b+3}]')
    mid()
    a('s_add_u32 s69, s69, 1'); a('s_cmp_lt_u32 s69, 4'); a('s_cbranch_scc1 KGL')
    a('s_waitcnt lgkmcnt(0)')

def gen():
    a = Asm(); st = St(a)
    VC, V1 = 25, 21
    a(f'{KN}:')
    a('s_cmp_ge_u32 s2, 256'); a('s_cbranch_scc1 KEND')
    st(0)
    a('s_load_dwordx4 s[20:23], s[0:1], 64')
    a('s_load_dwordx4 s[4:7], s[0:1], 0')
    a('s_load_dwordx4 s[24:27], s[0:1], 80')
    a('s_load_dwordx4 s[76:79], s[0:1], 112')
    a('s_load_dwordx4 s[8:11], s[0:1], 16')
    a('s_load_dwordx4 s[12:15], s[0:1], 32')
    a('s_load_dwordx2 s[16:17], s[0:1], 48')
    a('s_load_dwordx4 s[72:75], s[0:1], 96')
    a('s_load_dwordx2 s[28:29], s[0:1], 128')
    a('v_lshrrev_b32 v1, 6, v0'); a('v_and_b32 v2, 63, v0'); a('v_readfirstlane_b32 s48, v1')
    a('v_and_b32 v4, 15, v2'); a('v_lshrrev_b32 v5, 4, v2')
    a('s_and_b32 s49, s48, 3'); a('s_lshr_b32 s50, s48, 2')
    a('s_cmp_eq_u32 s50, 2'); a('s_cbranch_scc1 HELP')
    a('s_and_b32 s30, s2, 7'); a('s_lshl_b32 s30, s30, 5'); a('s_lshr_b32 s31, s2, 3'); a('s_add_u32 s30, s30, s31')
    a('s_lshl_b32 s30, s30, 2'); a('s_add_u32 s31, s30, s49')
    a('s_lshl_b32 s57, s31, 8'); a('s_lshl_b32 s58, s50, 7'); a('s_add_u32 s57, s57, s58')
    a('v_lshl_add_u32 v26, v2, 1, s57'); a('s_lshl_b32 s57, s31, 1'); a('v_mov_b32 v7, s57')
    a('s_waitcnt lgkmcnt(0)')
    a('global_load_ushort v10, v26, s[6:7]'); a('global_load_ushort v11, v26, s[8:9]')
    a('global_load_ushort v14, v7, s[14:15]')
    a('global_load_ushort v12, v26, s[10:11]'); a('global_load_ushort v13, v26, s[12:13]')
    a('global_load_ushort v15, v7, s[16:17]')
    a('global_load_ushort v9, v7, s[72:73]')
    if TOUCH:
        a('s_lshl_b32 s57, s48, 2'); a('s_add_u32 s57, s57, 0')
        a('s_and_b32 s58, s2, 15'); a('s_lshl_b32 s58, s58, 18')
        a('s_cmp_eq_u32 s48, 0'); a('s_cbranch_scc1 TC0')
        a('s_cmp_eq_u32 s48, 1'); a('s_cbranch_scc1 TC1')
        a('s_cmp_eq_u32 s48, 2'); a('s_cbranch_scc1 TC2')
        a('s_cmp_eq_u32 s48, 3'); a('s_cbranch_scc1 TC3')
        a('s_branch TCD')
        a('TC0:')
        a('v_and_b32 v27, 1, v2'); a('v_lshlrev_b32 v27, 22, v27')
        a('s_lshl_b32 s59, s30, 12'); a('v_mov_b32 v28, s58'); a('v_mov_b32 v29, s59')
        a('v_cmp_gt_u32 vcc, 2, v2'); a('v_cndmask_b32 v28, v29, v28, vcc'); a('v_add_u32 v27, v27, v28')
        a(f'v_mov_b32 v28, {WS_F1}'); a('v_cmp_gt_u32 vcc, 4, v2'); a('v_cndmask_b32 v27, v28, v27, vcc')
        a('s_mov_b64 exec, 31'); a('global_load_dword v164, v27, s[28:29]'); a('s_mov_b64 exec, -1')
        a('s_branch TCE')
        a('TC1:')
        a('v_lshlrev_b32 v27, 18, v4'); a('s_mov_b64 exec, 0xffff'); a('global_load_dword v164, v27, s[76:77]'); a('s_mov_b64 exec, -1')
        a('s_branch TCE')
        a('TC2:')
        a('s_lshl_b32 s59, s30, 12'); a('v_mov_b32 v27, s59'); a('s_mov_b64 exec, 1'); a('global_load_dword v164, v27, s[26:27]'); a('s_mov_b64 exec, -1')
        a('s_branch TCE')
        a('TC3:')
        a('s_lshr_b32 s59, s2, 4'); a('s_lshl_b32 s59, s59, 18'); a('v_mov_b32 v27, s59'); a('s_mov_b64 exec, 1'); a('global_load_dword v164, v27, s[4:5]'); a('s_mov_b64 exec, -1')
        a('s_branch TCE')
        a('TCD:')
        a('v_lshlrev_b32 v27, 2, v2'); a('global_load_dword v164, v27, s[74:75]')
        a('TCE:')
    a('s_branch CONVP')
    a('HELP:')
    st.h = True
    if MAP:
        a('s_lshr_b32 s51, s2, 3'); a('s_and_b32 s51, s51, 15')
        a('s_and_b32 s56, s2, 7'); a('s_lshr_b32 s57, s2, 7'); a('s_lshl_b32 s57, s57, 3'); a('s_add_u32 s56, s56, s57')
    else:
        a('s_and_b32 s51, s2, 15'); a('s_lshr_b32 s56, s2, 4')
    a('v_lshrrev_b32 v34, 3, v2'); a('v_and_b32 v35, 7, v2')
    a('v_and_b32 v36, 1, v5'); a('v_lshlrev_b32 v36, 1, v36')
    a('s_and_b32 s57, s49, 1'); a('s_lshl_b32 s57, s57, 2')
    a('v_or_b32 v37, s57, v36'); a('v_xor_b32 v37, v37, v35'); a('v_lshlrev_b32 v37, 4, v37'); a('v_lshl_add_u32 v37, v34, 11, v37')
    a('s_lshl_b32 s57, s56, 18'); a('s_lshl_b32 s58, s49, 16'); a('s_add_u32 s57, s57, s58')
    a('s_lshl_b32 s58, s51, 7'); a('s_add_u32 s60, s57, s58')
    a('s_lshl_b32 s61, s49, 12')
    a(f's_sub_u32 s62, s60, {4*2048}')
    for i in range(4):
        a(f's_add_u32 s57, s62, {i*8*2048}'); a(f'v_add_u32 v{26+i}, s57, v37')
    a('s_lshl_b32 s57, s51, 9'); a('s_lshl_b32 s58, s49, 7'); a('s_add_u32 s57, s57, s58'); a('v_lshl_add_u32 v43, v4, 3, s57')
    a('s_waitcnt lgkmcnt(0)')
    srd(a, 36, 20, 4 << 20)
    srd(a, 40, 78, 256)
    a('v_mov_b32 v46, 0')
    a('s_or_b32 s57, s2, s49'); a('s_cmp_lg_u32 s57, 0'); a('s_cbranch_scc1 NONW')
    a('s_memrealtime s[68:69]'); a('s_waitcnt lgkmcnt(0)'); a('s_or_b32 s68, s68, 1')
    a('v_mov_b32 v54, s68'); a('v_mov_b32 v55, s69'); a('s_mov_b64 exec, 1')
    a('buffer_store_dwordx2 v[54:55], v46, s[40:43], 0 offen sc1'); a('s_mov_b64 exec, -1')
    a('NONW:')
    srd(a, 32, 22, 4 << 20)
    a('global_load_dwordx2 v[32:33], v43, s[24:25]')
    for i in range(4):
        a(f's_add_u32 m0, s61, {KT + i*1024}'); a('s_nop 0')
        a(f'buffer_load_dwordx4 v{26+i}, s[36:39], 0 offen lds')
    a('s_cmp_lg_u32 s49, 3'); a('s_cbranch_scc1 NOX')
    a('v_xor_b32 v44, v36, v35'); a('v_lshlrev_b32 v44, 4, v44'); a('v_lshl_add_u32 v44, v34, 11, v44')
    a('s_lshl_b32 s57, s56, 18'); a(f's_add_u32 s57, s57, {124*2048}'); a('s_lshl_b32 s58, s51, 7'); a('s_add_u32 s57, s57, s58')
    a(f's_mov_b32 m0, {KT + 128*128}'); a('s_nop 0')
    a('buffer_load_dwordx4 v44, s[36:39], s57 offen lds')
    a('NOX:')
    for i in range(4):
        a(f's_add_u32 s57, s60, {i*8*2048}'); a(f's_add_u32 m0, s61, {VT + i*1024}')
        a('buffer_load_dwordx4 v37, s[32:35], s57 offen lds')
    st(1)
    a(f'v_mov_b32 v25, {CNT}'); a('v_mov_b32 v21, 1')
    for r in range(12, 16): a(f'v_mov_b32 v{r}, 0')
    a('v_and_b32 v10, 7, v2'); a('v_lshlrev_b32 v10, 4, v10'); a(f'v_add_u32 v10, {CNT}, v10')
    a('ds_write_b128 v10, v[12:15]')
    a('s_waitcnt lgkmcnt(0)')
    a('s_barrier')
    srd(a, 44, 28, WS_SIZE)
    a('s_mov_b64 s[64:65], 1')
    a('v_lshlrev_b32 v6, 4, v2')
    a('s_and_b32 s30, s2, 7'); a('s_lshl_b32 s30, s30, 5'); a('s_lshr_b32 s31, s2, 3'); a('s_add_u32 s30, s30, s31')
    a('s_lshl_b32 s30, s30, 2'); a('s_add_u32 s31, s30, s49')
    a('v_lshrrev_b32 v46, 2, v4'); a('v_and_b32 v47, 3, v2'); a('v_lshrrev_b32 v48, 1, v47')
    a('s_lshl_b32 s57, s49, 1'); a('v_add_u32 v48, s57, v48')
    a('v_lshlrev_b32 v49, 1, v46'); a('v_xor_b32 v49, v48, v49'); a('v_lshlrev_b32 v49, 4, v49')
    a('v_and_b32 v50, 1, v47'); a('v_lshlrev_b32 v50, 3, v50')
    a('v_add_u32 v49, v49, v50'); a('v_lshl_add_u32 v49, v46, 9, v49'); a('v_lshl_add_u32 v49, v5, 12, v49'); a(f'v_add_u32 v49, {XT}, v49')
    a('v_lshrrev_b32 v51, 1, v46'); a('v_lshlrev_b32 v51, 1, v51'); a('v_and_b32 v52, 1, v5'); a('v_lshl_or_b32 v51, v52, 2, v51')
    a('v_xor_b32 v52, v48, v51'); a('v_xor_b32 v53, 4, v52')
    a('v_lshl_add_u32 v50, v46, 7, v50'); a('v_lshl_add_u32 v50, v5, 12, v50'); a(f'v_add_u32 v50, {VT}, v50')
    a('v_lshl_add_u32 v52, v52, 4, v50'); a('v_lshl_add_u32 v53, v53, 4, v50')
    a('s_lshl_b32 s57, s51, 18'); a('s_lshl_b32 s58, s49, 16'); a('s_add_u32 s57, s57, s58'); a('s_lshl_b32 s58, s56, 6')
    if STG:
        a('s_lshl_b32 s58, s56, 8'); a('s_add_u32 s57, s57, s58')
        a('v_lshlrev_b32 v54, 12, v5'); a('v_lshl_add_u32 v54, v4, 4, v54'); a('v_add_u32 v54, s57, v54')
        a('s_lshl_b32 s57, s49, 12'); a(f's_add_u32 s57, s57, {STGB}')
        for ph in range(4):
            a(f'v_or_b32 v{60}, {4*ph}, v5'); a('v_xor_b32 v60, v60, v4'); a('v_lshlrev_b32 v60, 4, v60'); a('v_lshl_add_u32 v60, v4, 8, v60')
            a(f'v_add_u32 v{(16,17,18,19)[ph]}, s57, v60')
        for i in range(4):
            a(f'v_add_u32 v60, {4*i}, v5'); a('v_xor_b32 v61, v60, v4'); a('v_lshlrev_b32 v61, 4, v61'); a('v_lshl_add_u32 v61, v60, 8, v61')
            a(f'v_add_u32 v{(7,8,9,22)[i]}, s57, v61')
    elif ROT:
        a('v_lshlrev_b32 v54, 4, v5'); a('v_add_u32 v54, s58, v54'); a('v_lshl_add_u32 v54, v4, 7, v54'); a('v_and_b32 v54, 1023, v54')
        a('v_lshl_add_u32 v54, v4, 12, v54'); a('v_add_u32 v54, s57, v54')
    else:
        a('s_add_u32 s57, s57, s58')
        a('v_lshlrev_b32 v54, 12, v4'); a('v_lshl_add_u32 v54, v5, 4, v54'); a('v_add_u32 v54, s57, v54')
    a('v_mov_b32 v46, 0')
    srd(a, 32, 4, 4 << 20)
    a('v_lshrrev_b32 v38, 5, v2'); a('v_lshlrev_b32 v38, 1, v38')
    for hb in range(2):
        a(f'v_or_b32 v39, {4*hb}, v38'); a('v_xor_b32 v39, v39, v35'); a('v_lshlrev_b32 v39, 4, v39'); a(f'v_lshl_add_u32 v{40+hb}, v34, 11, v39')
    a('s_setprio 2')
    a(f's_waitcnt vmcnt({XW})')
    for i in range(4):
        a(f's_add_u32 s57, s60, {i*8*2048}'); a(f's_add_u32 m0, s61, {XT + i*1024}')
        a(f'buffer_load_dwordx4 v{40+(i&1)}, s[32:35], s57 offen lds')
    a('s_waitcnt vmcnt(4)')
    lds_inc(a, VC, V1, C_TKV)
    a('v_lshlrev_b32 v56, 16, v32'); a('v_and_b32 v57, 0xffff0000, v32'); a('v_lshlrev_b32 v58, 16, v33'); a('v_and_b32 v59, 0xffff0000, v33')
    lds_spin(a, VC, 23, 4, C_TKV)
    st(2)
    U, KD, VD, KF = 64, 80, 98, 114
    for h in range(8): a(f'ds_read_b64_tr_b16 v[{KD+2*h}:{KD+2*h+1}], v52 offset:{KT - VT + 512*h}')
    a(f'ds_read_b64_tr_b16 v[{KD+16}:{KD+17}], v53 offset:{KT - VT + 512*8}')
    for h in range(6): a(f'ds_read_b64_tr_b16 v[{VD+2*h}:{VD+2*h+1}], v52 offset:{512*h}')
    a('s_waitcnt lgkmcnt(6)')
    for h in range(6, 8): a(f'ds_read_b64_tr_b16 v[{VD+2*h}:{VD+2*h+1}], v52 offset:{512*h}')
    for d in range(18):
        a(f'v_lshlrev_b32 v{KF+2*d}, 16, v{KD+d}'); a(f'v_and_b32 v{KF+2*d+1}, 0xffff0000, v{KD+d}')
    for hh in range(2):
        KV = 150
        ts = [4*y + 2*hh + p2 for p2 in range(2) for y in range(8)]
        for i, t in enumerate(ts): a(f'v_mul_f32 v{KV+i}, v56, v{KF+t+4}')
        for i, t in enumerate(ts): a(f'v_fmac_f32 v{KV+i}, v57, v{KF+t+3}')
        for i, t in enumerate(ts): a(f'v_fmac_f32 v{KV+i}, v58, v{KF+t+2}')
        for i, t in enumerate(ts): a(f'v_fmac_f32 v{KV+i}, v59, v{KF+t+1}')
        if hh == 0: a('s_waitcnt lgkmcnt(0)')
        for i, t in enumerate(ts):
            d = VD + 2*(t//4) + hh
            if t & 1: a(f'v_and_b32 v{26+(i%4)}, 0xffff0000, v{d}')
            else: a(f'v_lshlrev_b32 v{26+(i%4)}, 16, v{d}')
            a(f'v_mul_f32 v{KV+i}, v{KV+i}, v{26+(i%4)}')
        for p2 in range(2):
            O = 80 + 8*hh + 4*p2
            for jj in range(4): a(f'v_cvt_pk_bf16_f32 v{O+jj}, v{KV+8*p2+2*jj}, v{KV+8*p2+2*jj+1}')
            if STG:
                a(f'ds_write_b128 v{16 + 2*hh + p2}, v[{O}:{O+3}]')
            else:
                a(f's_mov_b32 s58, {WS_QKV + (2*hh+p2)*1024}')
                a(f'buffer_store_dwordx4 v[{O}:{O+3}], v54, s[44:47], s58 offen sc1')
        if hh == 0:
            a('s_cmp_lg_u32 s49, 0'); a('s_cbranch_scc1 NNL')
            a('buffer_load_dwordx2 v[62:63], v46, s[40:43], 0 offen sc1')
            a('NNL:')
    if STG:
        a('s_waitcnt lgkmcnt(0)')
        for i in range(4): a(f'ds_read_b128 v[{80+4*i}:{83+4*i}], v{(7,8,9,22)[i]}')
        for i in range(4):
            a(f's_waitcnt lgkmcnt({3-i})'); a(f's_mov_b32 s58, {WS_QKV + i*4*4096}')
            a(f'buffer_store_dwordx4 v[{80+4*i}:{83+4*i}], v54, s[44:47], s58 offen sc1')
    st.d(5)
    a('s_waitcnt vmcnt(5)')
    a('s_cmp_eq_u32 s49, 0'); a('s_cbranch_scc1 XL0'); a('s_waitcnt vmcnt(4)'); a('XL0:')
    st.d(6)
    lds_inc(a, VC, V1, C_TX)
    a('v_lshlrev_b32 v26, 5, v2')
    a('s_lshl_b32 s57, s2, 3'); a('s_lshl_b32 s58, s49, 1'); a('s_add_u32 s59, s57, s58'); a('s_lshl_b32 s57, s59, 11'); a('v_add_u32 v27, s57, v26')
    lds_spin(a, VC, 23, 4, C_TX)
    st.d(7)
    for ph in range(4):
        for h in range(2): a(f'ds_read_b64_tr_b16 v[{U+4*ph+2*h}:{U+4*ph+2*h+1}], v49 offset:{(16*h+ph)*128}')
    if STG:
        for ph in range(4):
            a(f's_waitcnt lgkmcnt({6-2*ph + ph})'); a(f'ds_write_b128 v{16+ph}, v[{U+4*ph}:{U+4*ph+3}]')
        a('s_waitcnt lgkmcnt(0)')
        for i in range(4): a(f'ds_read_b128 v[{U+4*i}:{U+4*i+3}], v{(7,8,9,22)[i]}')
        for i in range(4):
            a(f's_waitcnt lgkmcnt({3-i})'); a(f's_mov_b32 s58, {WS_QU + i*4*4096}')
            a(f'buffer_store_dwordx4 v[{U+4*i}:{U+4*i+3}], v54, s[44:47], s58 offen sc1')
    else:
      for ph in range(4):
        a(f's_waitcnt lgkmcnt({6-2*ph})')
        a(f's_mov_b32 s58, {WS_QU + ph*1024}')
        a(f'buffer_store_dwordx4 v[{U+4*ph}:{U+4*ph+3}], v54, s[44:47], s58 offen sc1')
    a('global_load_dwordx4 v[96:99], v27, s[4:5]'); a('global_load_dwordx4 v[100:103], v27, s[4:5] offset:16')
    a('global_load_dwordx4 v[104:107], v27, s[4:5] offset:2048'); a('global_load_dwordx4 v[108:111], v27, s[4:5] offset:2064')
    a('global_load_dwordx4 v[112:115], v26, s[74:75]'); a('global_load_dwordx4 v[116:119], v26, s[74:75] offset:16')
    st(3)
    a('s_lshl_b32 s66, s51, 8'); a('s_lshl_b32 s58, s56, 3'); a('s_add_u32 s66, s66, s58'); a(f's_add_u32 s66, s66, {WS_F1}')
    a('s_waitcnt vmcnt(10)')
    st.d(8)
    lds_inc(a, VC, V1, C_PKV)
    a('s_cmp_lg_u32 s49, 0'); a('s_cbranch_scc1 NPKV')
    a(f's_mov_b32 s71, {SPIN_MAX}')
    a('NONL:')
    a('v_readfirstlane_b32 s68, v62')
    a('s_memrealtime s[34:35]'); a('s_waitcnt lgkmcnt(0)')
    a('s_sub_u32 s34, s34, s68'); a('s_add_u32 s34, s34, 400')
    a('s_cmp_lt_u32 s34, 1600'); a('s_cselect_b32 s34, s68, 0')
    a('s_cmp_lg_u32 s34, 0'); a('s_cbranch_scc1 NONOK')
    a('s_sub_u32 s71, s71, 1'); a('s_cmp_eq_u32 s71, 0'); a('s_cbranch_scc1 NONOK')
    a('s_sleep 2')
    a('buffer_load_dwordx2 v[62:63], v46, s[40:43], 0 offen sc1')
    a('s_waitcnt vmcnt(0)')
    a('s_branch NONL')
    a('NONOK:')
    lds_spin(a, VC, 23, 4, C_PKV)
    a('s_mov_b64 exec, 1')
    a('buffer_store_dwordx2 v[62:63], v46, s[44:47], s66 offen sc1')
    a('s_mov_b64 exec, -1')
    a('s_waitcnt vmcnt(7)')
    a('s_branch NPKV2')
    a('NPKV:')
    a('s_waitcnt vmcnt(6)')
    a('NPKV2:')
    if DIAG: a('s_getreg_b32 s98, hwreg(HW_REG_HW_ID)'); a('s_getreg_b32 s99, hwreg(HW_REG_XCC_ID)')
    lds_inc(a, VC, V1, C_PU)
    a('s_cmp_lg_u32 s49, 0'); a('s_cbranch_scc1 NPU')
    lds_spin(a, VC, 23, 4, C_PU)
    a('s_mov_b64 exec, 1')
    a('buffer_store_dwordx2 v[62:63], v46, s[44:47], s66 offen offset:128 sc1')
    a('s_mov_b64 exec, -1')
    a('NPU:')
    st(4)
    a('s_waitcnt vmcnt(2)')
    a('s_cmp_eq_u32 s49, 0'); a('s_cbranch_scc1 GOK'); a('s_waitcnt vmcnt(0)'); a('GOK:')
    for rr in range(2): a(f'v_mov_b32 v{120+rr}, 0'); a(f'v_mov_b32 v{122+rr}, 0')
    for i in range(4):
        for rr in range(2):
            a(f'v_dot2c_f32_bf16 v{120+rr}, v{96+8*rr+i}, v{112+i}'); a(f'v_dot2c_f32_bf16 v{122+rr}, v{100+8*rr+i}, v{116+i}')
    a('s_nop 3')
    for rr in range(2): a(f'v_add_f32 v{120+rr}, v{120+rr}, v{122+rr}')
    for sh in (1, 2, 4, 8):
        for rr in range(2): a(f'v_add_f32_dpp v{120+rr}, v{120+rr}, v{120+rr} row_shr:{sh} row_mask:0xf bank_mask:0xf bound_ctrl:0')
    for rr in range(2): a(f'v_add_f32_dpp v{120+rr}, v{120+rr}, v{120+rr} row_bcast:15 row_mask:0xa bank_mask:0xf')
    for rr in range(2): a(f'v_add_f32_dpp v{120+rr}, v{120+rr}, v{120+rr} row_bcast:31 row_mask:0xc bank_mask:0xf')
    a('v_readlane_b32 s57, v120, 63'); a('v_readlane_b32 s58, v121, 63')
    a('v_mov_b32 v120, s57'); a('v_mov_b32 v121, s58'); a('v_cndmask_b32 v120, v121, v120, s[64:65]')
    a('v_cvt_pk_bf16_f32 v120, v120, v120'); a('v_lshlrev_b32 v120, 16, v120')
    a(f's_mov_b32 s62, {LOG2E}'); a('v_mul_f32 v120, s62, v120'); a('v_sub_f32 v120, 0, v120')
    a('v_exp_f32 v120, v120'); a('v_add_f32 v120, 1.0, v120'); a('v_rcp_f32 v120, v120')
    a('v_cvt_pk_bf16_f32 v120, v120, v120'); a('v_lshlrev_b32 v120, 16, v120')
    a('v_sub_f32 v121, 1.0, v120'); a('v_cvt_pk_bf16_f32 v120, v120, v121')
    a('s_lshl_b32 s57, s59, 2'); a(f's_add_u32 s57, s57, {WS_G}'); a('v_lshlrev_b32 v121, 2, v2')
    a('s_mov_b64 exec, 3'); a('buffer_store_dword v120, v121, s[44:47], s57 offen sc1'); a('s_mov_b64 exec, -1')
    QR = 64
    a('s_lshl_b32 s58, s31, 12')
    def qload(t):
        for ph in range(4):
            a(f's_add_u32 s59, s58, {(WS_QU, WS_QKV)[t] + ph*1024}')
            a(f'buffer_load_dwordx4 v[{QR+16*t+4*ph}:{QR+16*t+4*ph+3}], v6, s[44:47], s59 offen sc1')
    a(f's_mul_i32 s59, s49, {REG}'); a(f's_add_u32 s59, s59, {QOFF + 128}')
    if STG:
        a('v_bfe_u32 v11, v2, 2, 2'); a('v_mul_u32_u24 v11, 1152, v11'); a('v_lshl_add_u32 v11, v5, 6, v11')
        a('v_and_b32 v12, 3, v2'); a('v_lshl_add_u32 v11, v12, 4, v11'); a('v_add_u32 v11, s59, v11')
    elif ROT:
        a('s_and_b32 s57, s31, 7'); a('s_lshl_b32 s57, s57, 7'); a('v_subrev_u32 v11, s57, v6'); a('v_and_b32 v11, 1023, v11'); a('v_add_u32 v11, s59, v11')
    else:
        a('v_add_u32 v11, s59, v6')
    a(f'v_add_u32 v10, {4*REG}, v11')
    a('s_cmp_lg_u32 s49, 0'); a('s_cbranch_scc1 POLLO')
    a('s_lshr_b32 s57, s30, 6'); a('s_lshl_b32 s57, s57, 8'); a(f's_add_u32 s57, s57, {WS_F1}')
    a('v_lshlrev_b32 v14, 3, v2'); a(f's_mov_b32 s71, {SPIN_MAX}'); a('s_mov_b32 s70, 0'); a('s_mov_b32 s33, 0')
    a('POLL:')
    a('s_mov_b64 exec, 0xffffffff')
    a('buffer_load_dwordx2 v[12:13], v14, s[44:47], s57 offen sc1')
    a('s_waitcnt vmcnt(0)')
    a('v_xor_b32 v12, v12, v62'); a('v_xor_b32 v13, v13, v63'); a('v_or_b32 v12, v12, v13'); a('v_cmp_ne_u32 vcc, 0, v12')
    a('s_mov_b64 exec, -1')
    a('s_mov_b32 s67, vcc_lo')
    a('s_cmp_lg_u32 s33, 0'); a('s_cbranch_scc1 G2D')
    a(f'ds_read_b32 v23, v{VC} offset:{C_PG}'); a('s_waitcnt lgkmcnt(0)'); a('v_readfirstlane_b32 s63, v23')
    a('s_cmp_lt_u32 s63, 3'); a('s_cbranch_scc1 G2D')
    a('s_lshl_b32 s63, s2, 3'); a(f's_add_u32 s63, s63, {WS_F2}')
    a('s_mov_b64 exec, 1')
    a('buffer_store_dwordx2 v[62:63], v46, s[44:47], s63 offen sc1')
    a('s_mov_b64 exec, -1')
    a('s_mov_b32 s33, 1')
    a('G2D:')
    a('s_sub_u32 s71, s71, 1'); a('s_cmp_eq_u32 s71, 0'); a('s_cselect_b32 s67, 0, s67')
    a('s_cmp_lg_u32 s70, 0'); a('s_cbranch_scc1 POLL2')
    a('s_and_b32 s63, s67, 0xffff'); a('s_cmp_lg_u32 s63, 0'); a('s_cbranch_scc1 POLLS')
    lds_inc(a, VC, V1, C_FKV)
    qload(1)
    a('s_mov_b32 s70, 1')
    a('POLL2:')
    a('s_lshr_b32 s63, s67, 16'); a('s_cmp_eq_u32 s63, 0'); a('s_cbranch_scc1 POLLD')
    a('s_cmp_eq_u32 s70, 2'); a('s_cbranch_scc1 POLLS')
    a('s_waitcnt vmcnt(0)')
    for ph in range(4): a(f'ds_write_b128 v10, v[{QR+16+4*ph}:{QR+16+4*ph+3}] offset:{ph*QST}')
    a('s_waitcnt lgkmcnt(0)')
    lds_inc(a, VC, V1, C_QB)
    a('s_mov_b32 s70, 2')
    a('POLLS:')
    a('s_sleep 1'); a('s_branch POLL')
    a('POLLD:')
    lds_inc(a, VC, V1, C_FU)
    qload(0)
    a('s_cmp_eq_u32 s70, 2'); a('s_cbranch_scc1 QB_DONE')
    a('s_branch QB_W')
    a('POLLO:')
    a('s_waitcnt vmcnt(0)')
    lds_inc(a, VC, V1, C_PG)
    lds_spin(a, VC, 23, 1, C_FKV)
    qload(1)
    a(f'ds_read_b32 v23, v{VC} offset:{C_FU}'); a('s_waitcnt lgkmcnt(0)'); a('v_readfirstlane_b32 s70, v23')
    a('s_cmp_ge_u32 s70, 1'); a('s_cbranch_scc1 POLLO2')
    a('s_waitcnt vmcnt(0)')
    for ph in range(4): a(f'ds_write_b128 v10, v[{QR+16+4*ph}:{QR+16+4*ph+3}] offset:{ph*QST}')
    a('s_waitcnt lgkmcnt(0)')
    lds_inc(a, VC, V1, C_QB)
    lds_spin(a, VC, 23, 1, C_FU)
    qload(0)
    a('s_branch QB_DONE')
    a('POLLO2:')
    qload(0)
    a('QB_W:')
    a('s_waitcnt vmcnt(4)')
    for ph in range(4): a(f'ds_write_b128 v10, v[{QR+16+4*ph}:{QR+16+4*ph+3}] offset:{ph*QST}')
    a('s_waitcnt lgkmcnt(0)')
    lds_inc(a, VC, V1, C_QB)
    a('QB_DONE:')
    st(5)
    a('s_waitcnt vmcnt(0)')
    for ph in range(4): a(f'ds_write_b128 v11, v[{QR+4*ph}:{QR+4*ph+3}] offset:{ph*QST}')
    a('s_waitcnt lgkmcnt(0)')
    lds_inc(a, VC, V1, C_QA)
    st(6)
    a('s_cmp_lg_u32 s49, 0'); a('s_cbranch_scc1 PAO')
    a('s_cmp_lg_u32 s33, 0'); a('s_cbranch_scc1 G2E')
    lds_spin(a, VC, 23, 3, C_PG)
    a('s_lshl_b32 s57, s2, 3'); a(f's_add_u32 s57, s57, {WS_F2}')
    a('s_mov_b64 exec, 1')
    a('buffer_store_dwordx2 v[62:63], v46, s[44:47], s57 offen sc1')
    a('s_mov_b64 exec, -1')
    a('G2E:')
    a(f's_mov_b32 s71, {SPIN_MAX}')
    a('PA:')
    a(f's_mov_b32 s57, {WS_F2}')
    a('buffer_load_dwordx4 v[64:67], v6, s[44:47], s57 offen sc1')
    a('buffer_load_dwordx4 v[68:71], v6, s[44:47], s57 offen offset:1024 sc1')
    a('s_waitcnt vmcnt(0)')
    for i in range(8): a(f'v_xor_b32 v{64+i}, v{64+i}, v{62+(i&1)}')
    for i in range(1, 8): a(f'v_or_b32 v64, v64, v{64+i}')
    a('v_cmp_ne_u32 vcc, 0, v64')
    a('s_cmp_eq_u64 vcc, 0'); a('s_cbranch_scc1 PAD')
    a('s_sub_u32 s71, s71, 1'); a('s_cmp_eq_u32 s71, 0'); a('s_cbranch_scc1 PAD')
    a('s_sleep 8'); a('s_branch PA')
    a('PAD:')
    lds_inc(a, VC, V1, C_F2)
    a('s_branch PAE')
    a('PAO:')
    lds_spin(a, VC, 23, 1, C_F2)
    a('PAE:')
    st(7)
    srd(a, 36, 76, 4 << 20)
    a('s_lshl_b32 s57, s49, 8'); a('v_lshl_add_u32 v49, v2, 2, s57')
    for c in range(8):
        a(f's_mov_b32 s59, {WS_G + 1024*c}'); a(f'buffer_load_dword v{96+c}, v49, s[44:47], s59 offen sc1')
    VF, VO = 50, 51
    a('v_lshrrev_b32 v10, 2, v4'); a(f'v_mul_u32_u24 v10, {TS}, v10'); a('v_and_b32 v11, 3, v2'); a('v_lshl_add_u32 v10, v11, 3, v10')
    a('v_mul_u32_u24 v11, 40, v5'); a('v_add_u32 v10, v10, v11')
    a('s_mul_i32 s59, s49, 160'); a(f's_add_u32 s59, s59, {TA}'); a(f'v_add_u32 v{VF}, s59, v10')
    a('s_lshl_b32 s59, s49, 17'); a('s_lshl_b32 s60, s30, 1'); a('s_add_u32 s59, s59, s60')
    a(f'v_lshlrev_b32 v10, 11, v2'); a(f'v_add_u32 v{VO}, s59, v10')
    a('s_waitcnt vmcnt(0)')
    F = 64
    for gi, g2 in enumerate(GROUPS):
        lds_spin(a, VC, 23, 4, C_A + 4*gi)
        lds_spin(a, VC, 23, 4, C_B + 4*gi)
        c0 = min(g2); npass = len(g2)
        for p in range(npass):
            off = 640 * (c0 + p)
            a(f'ds_read_b64_tr_b16 v[{F+4*p}:{F+4*p+1}], v{VF} offset:{off}')
            a(f'ds_read_b64_tr_b16 v[{F+4*p+2}:{F+4*p+3}], v{VF} offset:{off + 4*TS}')
        for p in range(npass):
            a(f's_waitcnt lgkmcnt({2*(npass-1-p)})')
            A0, A1, B0, B1 = F+4*p, F+4*p+1, F+4*p+2, F+4*p+3
            G = 96 + c0 + p
            a(f'v_lshlrev_b32 v34, 16, v{G}'); a(f'v_and_b32 v35, 0xffff0000, v{G}')
            a(f'v_lshlrev_b32 v26, 16, v{A0}'); a(f'v_and_b32 v27, 0xffff0000, v{A0}')
            a(f'v_lshlrev_b32 v28, 16, v{A1}'); a(f'v_and_b32 v29, 0xffff0000, v{A1}')
            a(f'v_lshlrev_b32 v30, 16, v{B0}'); a(f'v_and_b32 v31, 0xffff0000, v{B0}')
            a(f'v_lshlrev_b32 v32, 16, v{B1}'); a(f'v_and_b32 v33, 0xffff0000, v{B1}')
            for i in range(4): a(f'v_mul_f32 v{26+i}, v{26+i}, v34')
            for i in range(4): a(f'v_fmac_f32 v{26+i}, v{30+i}, v35')
            a(f'v_cvt_pk_bf16_f32 v{A0}, v26, v27'); a(f'v_cvt_pk_bf16_f32 v{A1}, v28, v29')
            a(f's_mov_b32 s59, {256*(c0+p) * 2048}')
            a(f'buffer_store_dwordx2 v[{A0}:{A1}], v{VO}, s[36:39], s59 offen')
        F = 104 if F == 64 else 64
        if gi == 0: st(8)
    st(9)
    a('s_branch KFIN')
    a('CONVP:')
    st.h = False
    a(f's_mul_i32 s67, s48, {REG}')
    a('v_lshrrev_b32 v27, 3, v2'); a('v_mul_u32_u24 v27, 1152, v27'); a('v_and_b32 v28, 7, v2')
    a('v_lshl_add_u32 v27, v28, 4, v27'); a(f'v_add_u32 v27, {QOFF}, v27')
    a('v_and_b32 v28, 1, v2'); a('v_lshlrev_b32 v28, 4, v28')
    a('v_cmp_gt_u32 vcc, 32, v2'); a('v_cndmask_b32 v27, v28, v27, vcc'); a('v_add_u32 v8, s67, v27')
    for r in range(16, 20): a(f'v_mov_b32 v{r}, 0')
    a('ds_write_b128 v8, v[16:19]')
    a('s_waitcnt lgkmcnt(0)')
    a('s_barrier')
    st(1)
    a('s_mov_b64 s[64:65], 1')
    a('v_lshlrev_b32 v6, 4, v2')
    a(f'v_mov_b32 v25, {CNT}'); a('v_mov_b32 v21, 1')
    a('v_cvt_f32_u32 v46, v4'); a('v_cvt_f32_u32 v47, v4')
    a('s_mov_b32 s52, 0x00010001'); a('s_mov_b32 s53, 0x00010001')
    a('s_mov_b32 s54, 0xff00ff00'); a('s_mov_b32 s55, 0xff00ff00')
    a(f's_mov_b32 s62, {LOG2E}'); a(f's_mov_b32 s63, {INV2PI}')
    a(f's_mul_i32 s57, s48, 1280'); a(f's_add_u32 s57, s57, {PAR}')
    a('v_lshl_add_u32 v32, v2, 4, s57')
    a('s_sub_u32 s58, s57, 0'); a('v_lshl_add_u32 v40, v5, 6, s58')
    a('s_add_u32 s57, s57, 1024'); a('v_lshl_add_u32 v33, v2, 2, s57'); a('v_lshl_add_u32 v41, v5, 4, s57')
    a(f's_waitcnt vmcnt({2 if TOUCH else 1})')
    st(6)
    for r in (10, 11, 12, 13, 14, 15): a(f'v_lshlrev_b32 v{r}, 16, v{r}')
    a('v_mul_f32 v14, s62, v14'); a('v_mul_f32 v10, s62, v10')
    a('v_exp_f32 v14, v14'); a('v_exp_f32 v10, v10')
    a('v_cvt_pk_bf16_f32 v14, v14, v14'); a('v_cvt_pk_bf16_f32 v10, v10, v10')
    a('v_lshlrev_b32 v14, 16, v14'); a('v_lshlrev_b32 v10, 16, v10')
    a('v_mul_f32 v28, v10, v14'); a('v_mul_f32 v29, v11, v14')
    a('v_mul_f32 v28, s62, v28'); a('v_sub_f32 v28, 0, v28'); a('v_mul_f32 v29, s63, v29')
    a('v_add_f32 v14, v14, v14'); a('v_mul_f32 v30, v12, v14'); a('v_mul_f32 v31, v13, v14')
    a('ds_write_b128 v32, v[28:31]')
    a('s_mov_b32 s58, 0x45000000')
    a('v_mul_f32 v34, s58, v28'); a('v_mul_f32 v35, s58, v29')
    a('v_exp_f32 v34, v34'); a('v_fract_f32 v35, v35'); a('v_cos_f32 v36, v35'); a('v_sin_f32 v37, v35')
    a('v_mul_f32 v36, v36, v34'); a('v_mul_f32 v37, v37, v34')
    a('v_mul_f32 v38, v31, v37'); a('v_mul_f32 v39, v31, v36')
    a('v_fma_f32 v38, v30, v36, -v38'); a('v_fma_f32 v39, -v30, v37, -v39')
    a('v_cvt_pk_bf16_f32 v38, v38, v39')
    a('ds_write_b32 v33, v38')
    a('s_waitcnt lgkmcnt(0)')
    st(7)
    KACC, KB = 48, 64
    srd(a, 36, 26, 4 << 20)
    def mid():
        a(f's_lshl_b32 s57, s50, 2'); a('s_add_u32 s57, s57, s69'); a(f's_cmp_lg_u32 s57, {4 + SKIT}'); a('s_cbranch_scc1 NOSK')
        a('s_lshl_b32 s62, s31, 12')
        for i in range(4):
            a(f's_add_u32 m0, s67, {32 + i*1024}'); a(f's_add_u32 s63, s62, {i*1024}')
            a('buffer_load_dwordx4 v6, s[36:39], s63 offen lds')
        a('NOSK:')
    kgen_loop(a, 40, KACC, KB, mid)
    st(2)
    a(f's_lshl_b32 s57, s49, 12'); a(f's_add_u32 s57, s57, {PART}'); a('v_lshl_add_u32 v40, v2, 4, s57')
    a('s_lshl_b32 s57, s49, 2'); a(f'v_add_u32 v41, s57, v{VC}')
    a('s_nop 7')
    a('s_cmp_eq_u32 s50, 0'); a('s_cbranch_scc1 AEXP')
    for b in range(4): a(f'ds_write_b128 v40, v[{KACC+4*b}:{KACC+4*b+3}] offset:{b*1024}')
    a('s_waitcnt lgkmcnt(0)')
    lds_inc(a, 41, V1, C_PART)
    a('s_waitcnt vmcnt(0)')
    a('s_add_u32 s57, s67, 32'); a('v_mov_b32 v10, s57')
    a('ds_read_u16 v11, v10'); a('s_waitcnt lgkmcnt(0)')
    a('v_lshlrev_b32 v11, 16, v11'); a('v_lshlrev_b32 v9, 16, v9'); a('v_add_f32 v11, v11, v9')
    a('v_cvt_pk_bf16_f32 v11, v11, v11'); a('ds_write_b16 v10, v11')
    a('s_branch CSET')
    a('AEXP:')
    lds_spin(a, 41, 42, 1, C_PART)
    for b in range(4): a(f'ds_read_b128 v[{64+4*b}:{64+4*b+3}], v40 offset:{b*1024}')
    a('s_waitcnt lgkmcnt(0)')
    for i in range(16): a(f'v_add_f32 v{KACC+i}, v{KACC+i}, v{64+i}')
    a('v_mov_b32 v84, 0'); a('v_cndmask_b32 v84, v84, v15, s[64:65]'); a(f'v_add_f32 v{KACC}, v{KACC}, v84')
    a('s_add_u32 s57, s67, 32'); a('v_mov_b32 v85, s57')
    gen_expand(a, KACC, 85, 88)
    a('CSET:')
    st(3)
    VA, VB, VIDX, VZERO, VT_, VX = 16, 17, 18, 19, 20, 22
    a('v_lshrrev_b32 v10, 2, v4'); a('v_and_b32 v11, 3, v2'); a('v_sub_u32 v11, v11, v10'); a('v_lshlrev_b32 v11, 3, v11')
    a('v_lshlrev_b32 v10, 6, v5'); a('v_sub_u32 v11, v11, v10'); a('s_add_u32 s59, s67, 224'); a(f'v_add_u32 v{VA}, s59, v11')
    a('v_lshlrev_b32 v10, 3, v4'); a('v_lshl_add_u32 v10, v5, 4, v10'); a(f's_add_u32 s59, s67, {QOFF + 8}'); a(f'v_add_u32 v{VB}, s59, v10')
    a('v_add_u32 v10, -1, v4'); a('v_and_b32 v10, 15, v10'); a('v_add_u32 v10, 48, v10')
    a('v_add_u32 v11, -16, v2'); a('v_cmp_gt_u32 vcc, 16, v2'); a('v_cndmask_b32 v10, v11, v10, vcc'); a(f'v_lshlrev_b32 v{VIDX}, 2, v10')
    a(f'v_mov_b32 v{VZERO}, 0')
    a(f's_mul_i32 s59, s49, {TS}'); a(f's_mul_i32 s60, s50, {4*TS}'); a('s_add_u32 s59, s59, s60'); a(f's_add_u32 s59, s59, {TA}')
    a('v_mul_u32_u24 v10, 40, v4'); a('v_lshl_add_u32 v10, v5, 3, v10'); a(f'v_add_u32 v{VT_}, s59, v10')
    a(f's_mul_i32 s59, s49, {REG}'); a(f's_add_u32 s59, s59, {QOFF + 128}')
    a('v_lshlrev_b32 v10, 3, v4'); a('v_lshl_add_u32 v10, v5, 1, v10'); a(f'v_add_u32 v{VX}, s59, v10')
    AF, CACC, BR, NB, TMP, XR = 32, 96, 116, NBR, 140, 150
    a('s_cmp_eq_u32 s50, 0'); a('s_cbranch_scc0 CONVB')
    q = DSQ(a)
    def epiA(gi, grp, acc):
        q.waitall()
        for j, c in enumerate(grp):
            r = XR + 2*(j % 4)
            a(f'v_cvt_pk_bf16_f32 v{r}, v{acc(c)}, v{acc(c)+1}'); a(f'v_cvt_pk_bf16_f32 v{r+1}, v{acc(c)+2}, v{acc(c)+3}')
            a(f'ds_write_b64 v{VT_}, v[{r}:{r+1}] offset:{640*c}')
        a('s_waitcnt lgkmcnt(0)')
        lds_inc(a, VC, V1, C_A + 4*gi); q.n += 1
    def preA():
        lds_spin(a, VC, 23, 4, C_QA); st(4)
    conv(a, q, GROUPS, AF, CACC, BR, NB, TMP, VA, VB, VIDX, VZERO, epiA, preA)
    st(5)
    a('s_branch KFIN')
    a('CONVB:')
    if BPRIO: a(f's_setprio {BPRIO}')
    q2 = DSQ(a)
    def epiB(gi, grp, acc):
        q2.waitall()
        if gi == 0: lds_spin(a, VC, 23, 4, C_QA)
        for j0 in range(0, len(grp), 4):
            sub = grp[j0:j0+4]
            for j, c in enumerate(sub):
                for ph in range(4): q2.issue(f'ds_read_u16_d16_hi v{XR+4*j+ph}, v{VX} offset:{ph*1152+128*c}')
                if j % 2 == 1: q2.wait(q2.n - 4)
            q2.waitall()
            for j, c in enumerate(sub):
                for i in range(4): a(f'v_and_b32 v{XR+4*j+i}, 0xffff0000, v{XR+4*j+i}')
                for i in range(4): a(f'v_mul_f32 v{XR+4*j+i}, v{XR+4*j+i}, v{acc(c)+i}')
                a(f'v_cvt_pk_bf16_f32 v{XR+4*j}, v{XR+4*j}, v{XR+4*j+1}'); a(f'v_cvt_pk_bf16_f32 v{XR+4*j+1}, v{XR+4*j+2}, v{XR+4*j+3}')
                a(f'ds_write_b64 v{VT_}, v[{XR+4*j}:{XR+4*j+1}] offset:{640*c}')
            a('s_waitcnt lgkmcnt(0)')
        lds_inc(a, VC, V1, C_B + 4*gi); q2.n += 1
    def preB():
        lds_spin(a, VC, 23, 4, C_QB); st(4)
    conv(a, q2, GROUPS, AF, CACC, BR, NB, TMP, VA, VB, VIDX, VZERO, epiB, preB)
    st(5)
    a('KFIN:')
    st(10); st.dump(11)
    a('KEND:')
    a('s_endpgm')
    return a, 168, LDS

SKIT = int(os.environ.get('SKIT', '3'))
TOUCH = int(os.environ.get('TOUCH', '0'))
MAP = int(os.environ.get('MAP', '0'))
STG = int(os.environ.get('STG', '1'))
XW = int(os.environ.get('XW', '4'))
QST = 256 if STG else 1152
STGB = PART + 16384
ROT = int(os.environ.get('ROT', '0'))
BPRIO = int(os.environ.get('BPRIO', '1'))
def build(path):
    hdr = open('cdna_kernels/' + NAME + '.s.ref').read().split('\n')
    head = [l for l in hdr[:18] if l.startswith(';') and '@launch' not in l and 'Override' not in l and 'grid=ceil' not in l]
    k, nv, lds = gen()
    out = head[:]
    out.append(f'; @launch grid=(256,1,1) block=(768,1,1) lds={lds}')
    out.append('.amdgcn_target "amdgcn-amd-amdhsa--gfx950"'); out.append('.text')
    out.append(f'.globl {KN}'); out.append('.p2align 8'); out.append(f'.type {KN},@function')
    lines, nn = k.finalize(); print('instrs', len(lines), 'nops', nn)
    out += lines
    out.append('.section .rodata,"a"'); out.append(kd(KN, nv))
    open(path, 'w').write('\n'.join(out) + '\n')

if __name__ == '__main__':
    if len(sys.argv) > 2:
        gen1.STAMPS = True
        if sys.argv[2] == 'c': gen1.STAMPOP = 's_memtime'
    build(sys.argv[1])
```

```python
import sys
import gen1
from asmlib import Asm
from gen1 import srd, LOG2E, INV2PI, NAME, gen_expand, WS_QU, WS_QKV, WS_G
from gen2 import DSQ, kd
from gen4 import kgen_step, lds_spin, SPIN_MAX

WS_F1 = (12 << 20) + 8192
WS_F2 = WS_F1 + 4096
WS_SIZE = WS_F2 + 2048
WS_DBG = 13 << 20
REG = 8736; QOFF = 4128
CNT = 8 * REG
XT = CNT + 128
VT = XT + 16384
KT = VT + 16384
PAR = KT + 17408
PART = PAR + 10240
LDS = PART + 16384 + 16384
TS = 5184
TA = XT; TB = XT + 4 * TS
KN = 'gated_mix__ssm_conv_s4d__ssm_conv_h3__prompt_kernel'
import os
GROUPS = eval(os.environ.get('GRP', '((0,1,2,3),(4,5,6,7))'))
NBR = int(os.environ.get('NB', '6'))
C_TKV, C_TX, C_PKV, C_PU, C_FKV, C_FU, C_QB, C_QA, C_PG, C_F2, C_A, C_B, C_PART = 0, 4, 8, 12, 16, 20, 24, 28, 32, 36, 40, 56, 72

DIAG = os.environ.get('DIAG')
class St:
    def __init__(self, a): self.a = a; self.h = False
    def d(self, n):
        if DIAG and gen1.STAMPS: self.a(f'{gen1.STAMPOP} s[{80+2*n}:{81+2*n}]')
    def __call__(self, n):
        if DIAG and self.h and 5 <= n <= 9: return
        if gen1.STAMPS: self.a(f'{gen1.STAMPOP} s[{80+2*n}:{81+2*n}]')
    def dump(self, n):
        if not gen1.STAMPS: return
        a = self.a
        a('s_waitcnt vmcnt(0) lgkmcnt(0)')
        a('s_mul_i32 s66, s2, 12'); a('s_add_u32 s66, s66, s48'); a('s_lshl_b32 s66, s66, 7'); a(f's_add_u32 s66, s66, {WS_DBG}')
        a('v_mov_b32 v1, s66'); a('s_mov_b64 exec, 1')
        for i in range(n):
            a(f'v_mov_b32 v2, s{80+2*i}'); a(f'v_mov_b32 v3, s{81+2*i}')
            a(f'global_store_dwordx2 v1, v[2:3], s[28:29] offset:{8*i}')
        a('s_mov_b64 exec, -1')

def lds_inc(a, VC, V1, off):
    a('s_mov_b64 exec, 1'); a(f'ds_add_u32 v{VC}, v{V1} offset:{off}'); a('s_mov_b64 exec, -1')

def conv(a, q, groups, AF, ACC, BR, NB, TMP, VA, VB, VIDX, VZERO, epilogue, pre, pdrop=None):
    items = []
    for gi, grp in enumerate(groups):
        for ph in (3, 2, 1, 0):
            for mu in range(-1, 2 * max(grp) + 1):
                items.append((gi, ph, mu, [c for c in grp if mu <= 2 * c]))
    c0of = {}
    for grp in groups:
        for c in grp: c0of[c] = min(grp)
    def acc(c): return ACC + 4 * (c - c0of[c])
    btag = {}; atag = {}
    def loadB(i):
        gi, ph, mu, _ = items[i]
        if os.environ.get('NOB') and i >= NB:
            btag[i] = 0; return
        s = BR + 4 * (i % NB); off = ph * 1152 + 64 * (mu + 1)
        q.issue(f'ds_read_b64 v[{s}:{s+1}], v{VB} offset:{off}')
        btag[i] = q.issue(f'ds_read_b64 v[{s+2}:{s+3}], v{VB} offset:{off+8}')
    def loadA(m):
        r = AF + 4 * m
        q.issue(f'ds_read_b64_tr_b16 v[{r}:{r+1}], v{VA} offset:{256*m+32}')
        atag[m] = q.issue(f'ds_read_b64_tr_b16 v[{r+2}:{r+3}], v{VA} offset:{256*m}')
    aorder = []
    for gi, ph, mu, cs in items:
        for c in cs:
            m = 2 * c - mu
            if m not in aorder: aorder.append(m)
    first_use = {}
    for i, (gi, ph, mu, cs) in enumerate(items):
        for c in cs: first_use.setdefault(2 * c - mu, i)
    apend = list(aorder)
    def tmpreg(c, ph):
        for gi, grp in enumerate(groups):
            if c == max(grp) and gi < len(groups) - 1: return TMP + 4 + 3 * gi + (ph - 1)
        return TMP + (c - c0of[c])
    pend = []; nm = [0]
    def shift_bperm(e):
        c, ph = e['c'], e['ph']
        e['tag'] = q.issue(f'ds_bpermute_b32 v{tmpreg(c,ph)}, v{VIDX}, v{acc(c)+3}')
        e['stage'] = 1; e['since'] = nm[0]
    def shift_fin(e):
        c, ph = e['c'], e['ph']
        q.wait(e['tag'])
        r = acc(c)
        prev = f'v{tmpreg(c-1,ph)}' if c > 0 else f'v{VZERO}'
        a(f'v_mov_b32 v{r+3}, v{r+2}'); a(f'v_mov_b32 v{r+2}, v{r+1}'); a(f'v_mov_b32 v{r+1}, v{r}')
        a(f'v_cndmask_b32 v{r}, v{tmpreg(c,ph)}, {prev}, s[64:65]')
        e['stage'] = 2
    def progress(force_c=None):
        for e in list(pend):
            if e['stage'] == 0 and (nm[0] - e['since'] >= 6 or force_c is not None): shift_bperm(e)
            elif e['stage'] == 1 and (nm[0] - e['since'] >= 6 or force_c is not None):
                shift_fin(e); pend.remove(e)
            if force_c is not None and e['c'] == force_c and e in pend:
                if e['stage'] == 0: shift_bperm(e)
                shift_fin(e); pend.remove(e)
            if e in pend and force_c is None: break
            if force_c is not None and e['c'] == force_c: break
    a('s_waitcnt lgkmcnt(0)')
    while apend:
        loadA(apend.pop(0))
        if q.n - q.done > 12: q.wait(q.n - 8)
    q.waitall()
    pre()
    nbl = 0
    for i in range(2): loadB(i)
    nbl = 2
    for i, (gi, ph, mu, cs) in enumerate(items):
        cs = [c for c in cs if not any(e['c'] == c for e in pend)] + [c for c in cs if any(e['c'] == c for e in pend)]
        if pdrop is not None and (gi, ph, mu) == (pdrop[0], pdrop[1], -1): a(f's_setprio {pdrop[2]}')
        if nbl <= i: loadB(nbl); nbl += 1
        for c in cs:
            m = 2 * c - mu
            while m not in atag:
                if q.n - q.done > 12: q.wait(q.n - 8)
                loadA(apend.pop(0))
            k = 0
            while apend and first_use[apend[0]] <= i + 12 and (q.n - q.done) <= 11 and k < 2:
                loadA(apend.pop(0)); k += 1
            if any(e['c'] == c for e in pend): progress(force_c=c)
            q.wait(btag[i]); q.wait(atag[m])
            s = BR + 4 * (i % NB)
            cin = '0' if (ph == 3 and mu == -1) else f'v[{acc(c)}:{acc(c)+3}]'
            a(f'v_mfma_f32_16x16x32_bf16 v[{acc(c)}:{acc(c)+3}], v[{AF+4*m}:{AF+4*m+3}], v[{s}:{s+3}], {cin}')
            nm[0] += 1
            if mu == 2 * c and ph > 0 and not os.environ.get('NOSHIFT'): pend.append(dict(c=c, ph=ph, stage=0, since=nm[0], tag=None))
            progress()
            if nbl < min(i + NB, len(items)) and (q.n - q.done) <= 11:
                loadB(nbl); nbl += 1
        if (i + 1 == len(items)) or items[i + 1][0] != gi:
            assert not pend
            epilogue(gi, groups[gi], acc)


def kgen_loop(a, PARB, acc, base, mid):
    P = base; Z = base + 20; X = base + 28; T = base + 36; Y = base + 44; XB = base + 60
    E = range(4)
    def z(e): return f'v[{Z+2*e}:{Z+2*e+1}]'
    def x(e): return f'v[{X+2*e}:{X+2*e+1}]'
    def t(e): return f'v[{T+2*e}:{T+2*e+1}]'
    def rd():
        for e in E: a(f'ds_read_b128 v[{P+4*e}:{P+4*e+3}], v{PARB} offset:{e*16}')
        a(f'ds_read_b128 v[{P+16}:{P+19}], v{PARB+1}')
    for i in range(16): a(f'v_mov_b32 v{acc+i}, 0')
    rd()
    a('s_mov_b32 s69, 0')
    a('KGL:')
    a(f'v_add_u32 v{PARB}, 256, v{PARB}'); a(f'v_add_u32 v{PARB+1}, 64, v{PARB+1}')
    a('s_waitcnt lgkmcnt(0)')
    for e in E: a(f'v_pk_mul_f32 {t(e)}, v[{P+4*e}:{P+4*e+1}], v[46:47]')
    for e in E: a(f'v_exp_f32 v{T+2*e}, v{T+2*e}')
    for e in E: a(f'v_fract_f32 v{T+2*e+1}, v{T+2*e+1}')
    for e in E: a(f'v_cos_f32 v{Z+2*e}, v{T+2*e+1}')
    for e in E: a(f'v_sin_f32 v{Z+2*e+1}, v{T+2*e+1}')
    for e in E: a(f'v_pk_mul_f32 {z(e)}, {z(e)}, {t(e)} op_sel:[0,0] op_sel_hi:[1,0]')
    def sqall():
        for e in E: a(f'v_pk_mul_f32 {t(e)}, {z(e)}, {z(e)} op_sel:[0,0] op_sel_hi:[0,1]')
        for e in E: a(f'v_pk_fma_f32 {z(e)}, {z(e)}, {z(e)}, {t(e)} op_sel:[1,1,0] op_sel_hi:[0,1,1] neg_lo:[1,0,0]')
    for b in range(4):
        for e in E: a(f'v_cvt_pk_bf16_f32 v{Y+4*b+e}, v{Z+2*e}, v{Z+2*e+1}')
        sqall()
    for e in E: a(f'v_pk_mul_f32 {t(e)}, v[{P+4*e+2}:{P+4*e+3}], {z(e)} op_sel:[1,1] op_sel_hi:[1,0]')
    for e in E: a(f'v_pk_fma_f32 {x(e)}, v[{P+4*e+2}:{P+4*e+3}], {z(e)}, {t(e)} op_sel:[0,0,0] op_sel_hi:[0,1,1] neg_lo:[0,0,1] neg_hi:[1,0,1]')
    for e in E: a(f'v_cvt_pk_bf16_f32 v{XB+e}, v{X+2*e}, v{X+2*e+1}')
    for b in range(1, 4):
        for e in E: a(f'v_pk_mul_f32 {t(e)}, {x(e)}, {z(e)} op_sel:[0,0] op_sel_hi:[1,0]')
        for e in E: a(f'v_pk_fma_f32 {x(e)}, {x(e)}, {z(e)}, {t(e)} op_sel:[1,1,0] op_sel_hi:[0,1,1] neg_hi:[1,0,0]')
        for e in E: a(f'v_cvt_pk_bf16_f32 v{XB+4*b+e}, v{X+2*e}, v{X+2*e+1}')
        if b < 3: sqall()
    for e in E: a(f'v_cndmask_b32 v{XB+12+e}, v{XB+12+e}, v{P+16+e}, s[52:53]')
    rd()
    for b in range(4):
        a(f'v_mfma_f32_16x16x32_bf16 v[{acc+4*b}:{acc+4*b+3}], v[{Y+4*b}:{Y+4*b+3}], v[{XB+4*b}:{XB+4*b+3}], v[{acc+4*b}:{acc+4*b+3}]')
    mid()
    a('s_add_u32 s69, s69, 1'); a('s_cmp_lt_u32 s69, 4'); a('s_cbranch_scc1 KGL')
    a('s_waitcnt lgkmcnt(0)')

def gen():
    a = Asm(); st = St(a)
    VC, V1 = 25, 21
    a(f'{KN}:')
    a('s_cmp_ge_u32 s2, 256'); a('s_cbranch_scc1 KEND')
    st(0)
    a('s_load_dwordx4 s[20:23], s[0:1], 64')
    a('s_load_dwordx4 s[4:7], s[0:1], 0')
    a('s_load_dwordx4 s[24:27], s[0:1], 80')
    a('s_load_dwordx4 s[76:79], s[0:1], 112')
    a('s_load_dwordx4 s[8:11], s[0:1], 16')
    a('s_load_dwordx4 s[12:15], s[0:1], 32')
    a('s_load_dwordx2 s[16:17], s[0:1], 48')
    a('s_load_dwordx4 s[72:75], s[0:1], 96')
    a('s_load_dwordx2 s[28:29], s[0:1], 128')
    a('v_lshrrev_b32 v1, 6, v0'); a('v_and_b32 v2, 63, v0'); a('v_readfirstlane_b32 s48, v1')
    a('v_and_b32 v4, 15, v2'); a('v_lshrrev_b32 v5, 4, v2')
    a('s_and_b32 s49, s48, 3'); a('s_lshr_b32 s50, s48, 2')
    a('s_cmp_eq_u32 s50, 2'); a('s_cbranch_scc1 HELP')
    a('s_and_b32 s30, s2, 7'); a('s_lshl_b32 s30, s30, 5'); a('s_lshr_b32 s31, s2, 3'); a('s_add_u32 s30, s30, s31')
    a('s_lshl_b32 s30, s30, 2'); a('s_add_u32 s31, s30, s49')
    a('s_lshl_b32 s57, s31, 8'); a('s_lshl_b32 s58, s50, 7'); a('s_add_u32 s57, s57, s58')
    a('v_lshl_add_u32 v26, v2, 1, s57'); a('s_lshl_b32 s57, s31, 1'); a('v_mov_b32 v7, s57')
    a('s_waitcnt lgkmcnt(0)')
    a('global_load_ushort v10, v26, s[6:7]'); a('global_load_ushort v11, v26, s[8:9]')
    a('global_load_ushort v14, v7, s[14:15]')
    a('global_load_ushort v12, v26, s[10:11]'); a('global_load_ushort v13, v26, s[12:13]')
    a('global_load_ushort v15, v7, s[16:17]')
    a('global_load_ushort v9, v7, s[72:73]')
    if TOUCH:
        a('s_lshl_b32 s57, s48, 2'); a('s_add_u32 s57, s57, 0')
        a('s_and_b32 s58, s2, 15'); a('s_lshl_b32 s58, s58, 18')
        a('s_cmp_eq_u32 s48, 0'); a('s_cbranch_scc1 TC0')
        a('s_cmp_eq_u32 s48, 1'); a('s_cbranch_scc1 TC1')
        a('s_cmp_eq_u32 s48, 2'); a('s_cbranch_scc1 TC2')
        a('s_cmp_eq_u32 s48, 3'); a('s_cbranch_scc1 TC3')
        a('s_branch TCD')
        a('TC0:')
        a('v_and_b32 v27, 1, v2'); a('v_lshlrev_b32 v27, 22, v27')
        a('s_lshl_b32 s59, s30, 12'); a('v_mov_b32 v28, s58'); a('v_mov_b32 v29, s59')
        a('v_cmp_gt_u32 vcc, 2, v2'); a('v_cndmask_b32 v28, v29, v28, vcc'); a('v_add_u32 v27, v27, v28')
        a(f'v_mov_b32 v28, {WS_F1}'); a('v_cmp_gt_u32 vcc, 4, v2'); a('v_cndmask_b32 v27, v28, v27, vcc')
        a('s_mov_b64 exec, 31'); a('global_load_dword v164, v27, s[28:29]'); a('s_mov_b64 exec, -1')
        a('s_branch TCE')
        a('TC1:')
        a('v_lshlrev_b32 v27, 18, v4'); a('s_mov_b64 exec, 0xffff'); a('global_load_dword v164, v27, s[76:77]'); a('s_mov_b64 exec, -1')
        a('s_branch TCE')
        a('TC2:')
        a('s_lshl_b32 s59, s30, 12'); a('v_mov_b32 v27, s59'); a('s_mov_b64 exec, 1'); a('global_load_dword v164, v27, s[26:27]'); a('s_mov_b64 exec, -1')
        a('s_branch TCE')
        a('TC3:')
        a('s_lshr_b32 s59, s2, 4'); a('s_lshl_b32 s59, s59, 18'); a('v_mov_b32 v27, s59'); a('s_mov_b64 exec, 1'); a('global_load_dword v164, v27, s[4:5]'); a('s_mov_b64 exec, -1')
        a('s_branch TCE')
        a('TCD:')
        a('v_lshlrev_b32 v27, 2, v2'); a('global_load_dword v164, v27, s[74:75]')
        a('TCE:')
    a('s_branch CONVP')
    a('HELP:')
    st.h = True
    if MAP:
        a('s_lshr_b32 s51, s2, 3'); a('s_and_b32 s51, s51, 15')
        a('s_and_b32 s56, s2, 7'); a('s_lshr_b32 s57, s2, 7'); a('s_lshl_b32 s57, s57, 3'); a('s_add_u32 s56, s56, s57')
    else:
        a('s_and_b32 s51, s2, 15'); a('s_lshr_b32 s56, s2, 4')
    a('v_lshrrev_b32 v34, 3, v2'); a('v_and_b32 v35, 7, v2')
    a('v_and_b32 v36, 1, v5'); a('v_lshlrev_b32 v36, 1, v36')
    a('s_and_b32 s57, s49, 1'); a('s_lshl_b32 s57, s57, 2')
    a('v_or_b32 v37, s57, v36'); a('v_xor_b32 v37, v37, v35'); a('v_lshlrev_b32 v37, 4, v37'); a('v_lshl_add_u32 v37, v34, 11, v37')
    a('s_lshl_b32 s57, s56, 18'); a('s_lshl_b32 s58, s49, 16'); a('s_add_u32 s57, s57, s58')
    a('s_lshl_b32 s58, s51, 7'); a('s_add_u32 s60, s57, s58')
    a('s_lshl_b32 s61, s49, 12')
    a(f's_sub_u32 s62, s60, {4*2048}')
    for i in range(4):
        a(f's_add_u32 s57, s62, {i*8*2048}'); a(f'v_add_u32 v{26+i}, s57, v37')
    a('s_lshl_b32 s57, s51, 9'); a('s_lshl_b32 s58, s49, 7'); a('s_add_u32 s57, s57, s58'); a('v_lshl_add_u32 v43, v4, 3, s57')
    a('s_waitcnt lgkmcnt(0)')
    srd(a, 36, 20, 4 << 20)
    srd(a, 40, 78, 256)
    a('v_mov_b32 v46, 0')
    a('s_or_b32 s57, s2, s49'); a('s_cmp_lg_u32 s57, 0'); a('s_cbranch_scc1 NONW')
    a('s_memrealtime s[68:69]'); a('s_waitcnt lgkmcnt(0)'); a('s_or_b32 s68, s68, 1')
    a('v_mov_b32 v54, s68'); a('v_mov_b32 v55, s69'); a('s_mov_b64 exec, 1')
    a('buffer_store_dwordx2 v[54:55], v46, s[40:43], 0 offen sc1'); a('s_mov_b64 exec, -1')
    a('NONW:')
    srd(a, 32, 22, 4 << 20)
    a('global_load_dwordx2 v[32:33], v43, s[24:25]')
    for i in range(4):
        a(f's_add_u32 m0, s61, {KT + i*1024}'); a('s_nop 0')
        a(f'buffer_load_dwordx4 v{26+i}, s[36:39], 0 offen lds')
    a('s_cmp_lg_u32 s49, 3'); a('s_cbranch_scc1 NOX')
    a('v_xor_b32 v44, v36, v35'); a('v_lshlrev_b32 v44, 4, v44'); a('v_lshl_add_u32 v44, v34, 11, v44')
    a('s_lshl_b32 s57, s56, 18'); a(f's_add_u32 s57, s57, {124*2048}'); a('s_lshl_b32 s58, s51, 7'); a('s_add_u32 s57, s57, s58')
    a(f's_mov_b32 m0, {KT + 128*128}'); a('s_nop 0')
    a('buffer_load_dwordx4 v44, s[36:39], s57 offen lds')
    a('NOX:')
    for i in range(4):
        a(f's_add_u32 s57, s60, {i*8*2048}'); a(f's_add_u32 m0, s61, {VT + i*1024}')
        a('buffer_load_dwordx4 v37, s[32:35], s57 offen lds')
    st(1)
    a(f'v_mov_b32 v25, {CNT}'); a('v_mov_b32 v21, 1')
    for r in range(12, 16): a(f'v_mov_b32 v{r}, 0')
    a('v_and_b32 v10, 7, v2'); a('v_lshlrev_b32 v10, 4, v10'); a(f'v_add_u32 v10, {CNT}, v10')
    a('ds_write_b128 v10, v[12:15]')
    a('s_waitcnt lgkmcnt(0)')
    a('s_barrier')
    srd(a, 44, 28, WS_SIZE)
    a('s_mov_b64 s[64:65], 1')
    a('v_lshlrev_b32 v6, 4, v2')
    a('s_and_b32 s30, s2, 7'); a('s_lshl_b32 s30, s30, 5'); a('s_lshr_b32 s31, s2, 3'); a('s_add_u32 s30, s30, s31')
    a('s_lshl_b32 s30, s30, 2'); a('s_add_u32 s31, s30, s49')
    a('v_lshrrev_b32 v46, 2, v4'); a('v_and_b32 v47, 3, v2'); a('v_lshrrev_b32 v48, 1, v47')
    a('s_lshl_b32 s57, s49, 1'); a('v_add_u32 v48, s57, v48')
    a('v_lshlrev_b32 v49, 1, v46'); a('v_xor_b32 v49, v48, v49'); a('v_lshlrev_b32 v49, 4, v49')
    a('v_and_b32 v50, 1, v47'); a('v_lshlrev_b32 v50, 3, v50')
    a('v_add_u32 v49, v49, v50'); a('v_lshl_add_u32 v49, v46, 9, v49'); a('v_lshl_add_u32 v49, v5, 12, v49'); a(f'v_add_u32 v49, {XT}, v49')
    a('v_lshrrev_b32 v51, 1, v46'); a('v_lshlrev_b32 v51, 1, v51'); a('v_and_b32 v52, 1, v5'); a('v_lshl_or_b32 v51, v52, 2, v51')
    a('v_xor_b32 v52, v48, v51'); a('v_xor_b32 v53, 4, v52')
    a('v_lshl_add_u32 v50, v46, 7, v50'); a('v_lshl_add_u32 v50, v5, 12, v50'); a(f'v_add_u32 v50, {VT}, v50')
    a('v_lshl_add_u32 v52, v52, 4, v50'); a('v_lshl_add_u32 v53, v53, 4, v50')
    a('s_lshl_b32 s57, s51, 18'); a('s_lshl_b32 s58, s49, 16'); a('s_add_u32 s57, s57, s58'); a('s_lshl_b32 s58, s56, 6')
    if STG:
        a('s_lshl_b32 s58, s56, 8'); a('s_add_u32 s57, s57, s58')
        a('v_lshlrev_b32 v54, 12, v5'); a('v_lshl_add_u32 v54, v4, 4, v54'); a('v_add_u32 v54, s57, v54')
        a('s_lshl_b32 s57, s49, 12'); a(f's_add_u32 s57, s57, {STGB}')
        for ph in range(4):
            a(f'v_or_b32 v{60}, {4*ph}, v5'); a('v_xor_b32 v60, v60, v4'); a('v_lshlrev_b32 v60, 4, v60'); a('v_lshl_add_u32 v60, v4, 8, v60')
            a(f'v_add_u32 v{(16,17,18,19)[ph]}, s57, v60')
        for i in range(4):
            a(f'v_add_u32 v60, {4*i}, v5'); a('v_xor_b32 v61, v60, v4'); a('v_lshlrev_b32 v61, 4, v61'); a('v_lshl_add_u32 v61, v60, 8, v61')
            a(f'v_add_u32 v{(7,8,9,22)[i]}, s57, v61')
    elif ROT:
        a('v_lshlrev_b32 v54, 4, v5'); a('v_add_u32 v54, s58, v54'); a('v_lshl_add_u32 v54, v4, 7, v54'); a('v_and_b32 v54, 1023, v54')
        a('v_lshl_add_u32 v54, v4, 12, v54'); a('v_add_u32 v54, s57, v54')
    else:
        a('s_add_u32 s57, s57, s58')
        a('v_lshlrev_b32 v54, 12, v4'); a('v_lshl_add_u32 v54, v5, 4, v54'); a('v_add_u32 v54, s57, v54')
    a('v_mov_b32 v46, 0')
    srd(a, 32, 4, 4 << 20)
    a('v_lshrrev_b32 v38, 5, v2'); a('v_lshlrev_b32 v38, 1, v38')
    for hb in range(2):
        a(f'v_or_b32 v39, {4*hb}, v38'); a('v_xor_b32 v39, v39, v35'); a('v_lshlrev_b32 v39, 4, v39'); a(f'v_lshl_add_u32 v{40+hb}, v34, 11, v39')
    a('s_setprio 2')
    a(f's_waitcnt vmcnt({XW})')
    for i in range(4):
        a(f's_add_u32 s57, s60, {i*8*2048}'); a(f's_add_u32 m0, s61, {XT + i*1024}')
        a(f'buffer_load_dwordx4 v{40+(i&1)}, s[32:35], s57 offen lds')
    a('s_waitcnt vmcnt(4)')
    lds_inc(a, VC, V1, C_TKV)
    a('v_lshlrev_b32 v56, 16, v32'); a('v_and_b32 v57, 0xffff0000, v32'); a('v_lshlrev_b32 v58, 16, v33'); a('v_and_b32 v59, 0xffff0000, v33')
    lds_spin(a, VC, 23, 4, C_TKV)
    st(2)
    U, KD, VD, KF = 64, 80, 98, 114
    for h in range(8): a(f'ds_read_b64_tr_b16 v[{KD+2*h}:{KD+2*h+1}], v52 offset:{KT - VT + 512*h}')
    a(f'ds_read_b64_tr_b16 v[{KD+16}:{KD+17}], v53 offset:{KT - VT + 512*8}')
    for h in range(6): a(f'ds_read_b64_tr_b16 v[{VD+2*h}:{VD+2*h+1}], v52 offset:{512*h}')
    a('s_waitcnt lgkmcnt(6)')
    for h in range(6, 8): a(f'ds_read_b64_tr_b16 v[{VD+2*h}:{VD+2*h+1}], v52 offset:{512*h}')
    for d in range(18):
        a(f'v_lshlrev_b32 v{KF+2*d}, 16, v{KD+d}'); a(f'v_and_b32 v{KF+2*d+1}, 0xffff0000, v{KD+d}')
    for hh in range(2):
        KV = 150
        ts = [4*y + 2*hh + p2 for p2 in range(2) for y in range(8)]
        for i, t in enumerate(ts): a(f'v_mul_f32 v{KV+i}, v56, v{KF+t+4}')
        for i, t in enumerate(ts): a(f'v_fmac_f32 v{KV+i}, v57, v{KF+t+3}')
        for i, t in enumerate(ts): a(f'v_fmac_f32 v{KV+i}, v58, v{KF+t+2}')
        for i, t in enumerate(ts): a(f'v_fmac_f32 v{KV+i}, v59, v{KF+t+1}')
        if hh == 0: a('s_waitcnt lgkmcnt(0)')
        for i, t in enumerate(ts):
            d = VD + 2*(t//4) + hh
            if t & 1: a(f'v_and_b32 v{26+(i%4)}, 0xffff0000, v{d}')
            else: a(f'v_lshlrev_b32 v{26+(i%4)}, 16, v{d}')
            a(f'v_mul_f32 v{KV+i}, v{KV+i}, v{26+(i%4)}')
        for p2 in range(2):
            O = 80 + 8*hh + 4*p2
            for jj in range(4): a(f'v_cvt_pk_bf16_f32 v{O+jj}, v{KV+8*p2+2*jj}, v{KV+8*p2+2*jj+1}')
            if STG:
                a(f'ds_write_b128 v{16 + 2*hh + p2}, v[{O}:{O+3}]')
            else:
                a(f's_mov_b32 s58, {WS_QKV + (2*hh+p2)*1024}')
                a(f'buffer_store_dwordx4 v[{O}:{O+3}], v54, s[44:47], s58 offen sc1')
        if hh == 0:
            a('s_cmp_lg_u32 s49, 0'); a('s_cbranch_scc1 NNL')
            a('buffer_load_dwordx2 v[62:63], v46, s[40:43], 0 offen sc1')
            a('NNL:')
    if STG:
        a('s_waitcnt lgkmcnt(0)')
        for i in range(4): a(f'ds_read_b128 v[{80+4*i}:{83+4*i}], v{(7,8,9,22)[i]}')
        for i in range(4):
            a(f's_waitcnt lgkmcnt({3-i})'); a(f's_mov_b32 s58, {WS_QKV + i*4*4096}')
            a(f'buffer_store_dwordx4 v[{80+4*i}:{83+4*i}], v54, s[44:47], s58 offen sc1')
    st.d(5)
    a('s_waitcnt vmcnt(5)')
    a('s_cmp_eq_u32 s49, 0'); a('s_cbranch_scc1 XL0'); a('s_waitcnt vmcnt(4)'); a('XL0:')
    st.d(6)
    lds_inc(a, VC, V1, C_TX)
    a('v_lshlrev_b32 v26, 5, v2')
    a('s_lshl_b32 s57, s2, 3'); a('s_lshl_b32 s58, s49, 1'); a('s_add_u32 s59, s57, s58'); a('s_lshl_b32 s57, s59, 11'); a('v_add_u32 v27, s57, v26')
    lds_spin(a, VC, 23, 4, C_TX)
    st.d(7)
    for ph in range(4):
        for h in range(2): a(f'ds_read_b64_tr_b16 v[{U+4*ph+2*h}:{U+4*ph+2*h+1}], v49 offset:{(16*h+ph)*128}')
    if STG:
        for ph in range(4):
            a(f's_waitcnt lgkmcnt({6-2*ph + ph})'); a(f'ds_write_b128 v{16+ph}, v[{U+4*ph}:{U+4*ph+3}]')
        a('s_waitcnt lgkmcnt(0)')
        for i in range(4): a(f'ds_read_b128 v[{U+4*i}:{U+4*i+3}], v{(7,8,9,22)[i]}')
        for i in range(4):
            a(f's_waitcnt lgkmcnt({3-i})'); a(f's_mov_b32 s58, {WS_QU + i*4*4096}')
            a(f'buffer_store_dwordx4 v[{U+4*i}:{U+4*i+3}], v54, s[44:47], s58 offen sc1')
    else:
      for ph in range(4):
        a(f's_waitcnt lgkmcnt({6-2*ph})')
        a(f's_mov_b32 s58, {WS_QU + ph*1024}')
        a(f'buffer_store_dwordx4 v[{U+4*ph}:{U+4*ph+3}], v54, s[44:47], s58 offen sc1')
    a('global_load_dwordx4 v[96:99], v27, s[4:5]'); a('global_load_dwordx4 v[100:103], v27, s[4:5] offset:16')
    a('global_load_dwordx4 v[104:107], v27, s[4:5] offset:2048'); a('global_load_dwordx4 v[108:111], v27, s[4:5] offset:2064')
    a('global_load_dwordx4 v[112:115], v26, s[74:75]'); a('global_load_dwordx4 v[116:119], v26, s[74:75] offset:16')
    st(3)
    a('s_lshl_b32 s66, s51, 8'); a('s_lshl_b32 s58, s56, 3'); a('s_add_u32 s66, s66, s58'); a(f's_add_u32 s66, s66, {WS_F1}')
    a('s_waitcnt vmcnt(10)')
    st.d(8)
    lds_inc(a, VC, V1, C_PKV)
    a('s_cmp_lg_u32 s49, 0'); a('s_cbranch_scc1 NPKV')
    a(f's_mov_b32 s71, {SPIN_MAX}')
    a('NONL:')
    a('v_readfirstlane_b32 s68, v62')
    a('s_memrealtime s[34:35]'); a('s_waitcnt lgkmcnt(0)')
    a('s_sub_u32 s34, s34, s68'); a('s_add_u32 s34, s34, 400')
    a('s_cmp_lt_u32 s34, 1600'); a('s_cselect_b32 s34, s68, 0')
    a('s_cmp_lg_u32 s34, 0'); a('s_cbranch_scc1 NONOK')
    a('s_sub_u32 s71, s71, 1'); a('s_cmp_eq_u32 s71, 0'); a('s_cbranch_scc1 NONOK')
    a(f's_cmp_lt_u32 s71, {SPIN_MAX - 64}'); a('s_cselect_b32 s34, s68, 0'); a('s_cmp_lg_u32 s34, 0'); a('s_cbranch_scc1 NONOK')
    a('s_sleep 2')
    a('buffer_load_dwordx2 v[62:63], v46, s[40:43], 0 offen sc1')
    a('s_waitcnt vmcnt(0)')
    a('s_branch NONL')
    a('NONOK:')
    lds_spin(a, VC, 23, 4, C_PKV)
    a('s_mov_b64 exec, 1')
    a('buffer_store_dwordx2 v[62:63], v46, s[44:47], s66 offen sc1')
    a('s_mov_b64 exec, -1')
    a('s_waitcnt vmcnt(7)')
    a('s_branch NPKV2')
    a('NPKV:')
    a('s_waitcnt vmcnt(6)')
    a('NPKV2:')
    if DIAG: a('s_getreg_b32 s98, hwreg(HW_REG_HW_ID)'); a('s_getreg_b32 s99, hwreg(HW_REG_XCC_ID)')
    lds_inc(a, VC, V1, C_PU)
    a('s_cmp_lg_u32 s49, 0'); a('s_cbranch_scc1 NPU')
    lds_spin(a, VC, 23, 4, C_PU)
    a('s_mov_b64 exec, 1')
    a('buffer_store_dwordx2 v[62:63], v46, s[44:47], s66 offen offset:128 sc1')
    a('s_mov_b64 exec, -1')
    a('NPU:')
    st(4)
    a('s_waitcnt vmcnt(2)')
    a('s_cmp_eq_u32 s49, 0'); a('s_cbranch_scc1 GOK'); a('s_waitcnt vmcnt(0)'); a('GOK:')
    for rr in range(2): a(f'v_mov_b32 v{120+rr}, 0'); a(f'v_mov_b32 v{122+rr}, 0')
    for i in range(4):
        for rr in range(2):
            a(f'v_dot2c_f32_bf16 v{120+rr}, v{96+8*rr+i}, v{112+i}'); a(f'v_dot2c_f32_bf16 v{122+rr}, v{100+8*rr+i}, v{116+i}')
    a('s_nop 3')
    for rr in range(2): a(f'v_add_f32 v{120+rr}, v{120+rr}, v{122+rr}')
    for sh in (1, 2, 4, 8):
        for rr in range(2): a(f'v_add_f32_dpp v{120+rr}, v{120+rr}, v{120+rr} row_shr:{sh} row_mask:0xf bank_mask:0xf bound_ctrl:0')
    for rr in range(2): a(f'v_add_f32_dpp v{120+rr}, v{120+rr}, v{120+rr} row_bcast:15 row_mask:0xa bank_mask:0xf')
    for rr in range(2): a(f'v_add_f32_dpp v{120+rr}, v{120+rr}, v{120+rr} row_bcast:31 row_mask:0xc bank_mask:0xf')
    a('v_readlane_b32 s57, v120, 63'); a('v_readlane_b32 s58, v121, 63')
    a('v_mov_b32 v120, s57'); a('v_mov_b32 v121, s58'); a('v_cndmask_b32 v120, v121, v120, s[64:65]')
    a('v_cvt_pk_bf16_f32 v120, v120, v120'); a('v_lshlrev_b32 v120, 16, v120')
    a(f's_mov_b32 s62, {LOG2E}'); a('v_mul_f32 v120, s62, v120'); a('v_sub_f32 v120, 0, v120')
    a('v_exp_f32 v120, v120'); a('v_add_f32 v120, 1.0, v120'); a('v_rcp_f32 v120, v120')
    a('v_cvt_pk_bf16_f32 v120, v120, v120'); a('v_lshlrev_b32 v120, 16, v120')
    a('v_sub_f32 v121, 1.0, v120'); a('v_cvt_pk_bf16_f32 v120, v120, v121')
    a('s_lshl_b32 s57, s59, 2'); a(f's_add_u32 s57, s57, {WS_G}'); a('v_lshlrev_b32 v121, 2, v2')
    a('s_mov_b64 exec, 3'); a('buffer_store_dword v120, v121, s[44:47], s57 offen sc1'); a('s_mov_b64 exec, -1')
    QR = 64
    a('s_lshl_b32 s58, s31, 12')
    def qload(t):
        for ph in range(4):
            a(f's_add_u32 s59, s58, {(WS_QU, WS_QKV)[t] + ph*1024}')
            a(f'buffer_load_dwordx4 v[{QR+16*t+4*ph}:{QR+16*t+4*ph+3}], v6, s[44:47], s59 offen sc1')
    a(f's_mul_i32 s59, s49, {REG}'); a(f's_add_u32 s59, s59, {QOFF + 128}')
    if STG:
        a('v_bfe_u32 v11, v2, 2, 2'); a('v_mul_u32_u24 v11, 1152, v11'); a('v_lshl_add_u32 v11, v5, 6, v11')
        a('v_and_b32 v12, 3, v2'); a('v_lshl_add_u32 v11, v12, 4, v11'); a('v_add_u32 v11, s59, v11')
    elif ROT:
        a('s_and_b32 s57, s31, 7'); a('s_lshl_b32 s57, s57, 7'); a('v_subrev_u32 v11, s57, v6'); a('v_and_b32 v11, 1023, v11'); a('v_add_u32 v11, s59, v11')
    else:
        a('v_add_u32 v11, s59, v6')
    a(f'v_add_u32 v10, {4*REG}, v11')
    a('s_cmp_lg_u32 s49, 0'); a('s_cbranch_scc1 POLLO')
    a('s_lshr_b32 s57, s30, 6'); a('s_lshl_b32 s57, s57, 8'); a(f's_add_u32 s57, s57, {WS_F1}')
    a('v_lshlrev_b32 v14, 3, v2'); a(f's_mov_b32 s71, {SPIN_MAX}'); a('s_mov_b32 s70, 0'); a('s_mov_b32 s33, 0')
    a('POLL:')
    a('s_mov_b64 exec, 0xffffffff')
    a('buffer_load_dwordx2 v[12:13], v14, s[44:47], s57 offen sc1')
    a('s_waitcnt vmcnt(0)')
    a('v_xor_b32 v12, v12, v62'); a('v_xor_b32 v13, v13, v63'); a('v_or_b32 v12, v12, v13'); a('v_cmp_ne_u32 vcc, 0, v12')
    a('s_mov_b64 exec, -1')
    a('s_mov_b32 s67, vcc_lo')
    a('s_cmp_lg_u32 s33, 0'); a('s_cbranch_scc1 G2D')
    a(f'ds_read_b32 v23, v{VC} offset:{C_PG}'); a('s_waitcnt lgkmcnt(0)'); a('v_readfirstlane_b32 s63, v23')
    a('s_cmp_lt_u32 s63, 3'); a('s_cbranch_scc1 G2D')
    a('s_lshl_b32 s63, s2, 3'); a(f's_add_u32 s63, s63, {WS_F2}')
    a('s_mov_b64 exec, 1')
    a('buffer_store_dwordx2 v[62:63], v46, s[44:47], s63 offen sc1')
    a('s_mov_b64 exec, -1')
    a('s_mov_b32 s33, 1')
    a('G2D:')
    a('s_sub_u32 s71, s71, 1'); a('s_cmp_eq_u32 s71, 0'); a('s_cselect_b32 s67, 0, s67')
    a('s_cmp_lg_u32 s70, 0'); a('s_cbranch_scc1 POLL2')
    a('s_and_b32 s63, s67, 0xffff'); a('s_cmp_lg_u32 s63, 0'); a('s_cbranch_scc1 POLLS')
    lds_inc(a, VC, V1, C_FKV)
    qload(1)
    a('s_mov_b32 s70, 1')
    a('POLL2:')
    a('s_lshr_b32 s63, s67, 16'); a('s_cmp_eq_u32 s63, 0'); a('s_cbranch_scc1 POLLD')
    a('s_cmp_eq_u32 s70, 2'); a('s_cbranch_scc1 POLLS')
    a('s_waitcnt vmcnt(0)')
    for ph in range(4): a(f'ds_write_b128 v10, v[{QR+16+4*ph}:{QR+16+4*ph+3}] offset:{ph*QST}')
    a('s_waitcnt lgkmcnt(0)')
    lds_inc(a, VC, V1, C_QB)
    a('s_mov_b32 s70, 2')
    a('POLLS:')
    a('s_sleep 1'); a('s_branch POLL')
    a('POLLD:')
    lds_inc(a, VC, V1, C_FU)
    qload(0)
    a('s_cmp_eq_u32 s70, 2'); a('s_cbranch_scc1 QB_DONE')
    a('s_branch QB_W')
    a('POLLO:')
    a('s_waitcnt vmcnt(0)')
    lds_inc(a, VC, V1, C_PG)
    lds_spin(a, VC, 23, 1, C_FKV)
    qload(1)
    a(f'ds_read_b32 v23, v{VC} offset:{C_FU}'); a('s_waitcnt lgkmcnt(0)'); a('v_readfirstlane_b32 s70, v23')
    a('s_cmp_ge_u32 s70, 1'); a('s_cbranch_scc1 POLLO2')
    a('s_waitcnt vmcnt(0)')
    for ph in range(4): a(f'ds_write_b128 v10, v[{QR+16+4*ph}:{QR+16+4*ph+3}] offset:{ph*QST}')
    a('s_waitcnt lgkmcnt(0)')
    lds_inc(a, VC, V1, C_QB)
    lds_spin(a, VC, 23, 1, C_FU)
    qload(0)
    a('s_branch QB_DONE')
    a('POLLO2:')
    qload(0)
    a('QB_W:')
    a('s_waitcnt vmcnt(4)')
    for ph in range(4): a(f'ds_write_b128 v10, v[{QR+16+4*ph}:{QR+16+4*ph+3}] offset:{ph*QST}')
    a('s_waitcnt lgkmcnt(0)')
    lds_inc(a, VC, V1, C_QB)
    a('QB_DONE:')
    st(5)
    a('s_waitcnt vmcnt(0)')
    for ph in range(4): a(f'ds_write_b128 v11, v[{QR+4*ph}:{QR+4*ph+3}] offset:{ph*QST}')
    a('s_waitcnt lgkmcnt(0)')
    lds_inc(a, VC, V1, C_QA)
    st(6)
    a('s_cmp_lg_u32 s49, 0'); a('s_cbranch_scc1 PAO')
    a('s_cmp_lg_u32 s33, 0'); a('s_cbranch_scc1 G2E')
    lds_spin(a, VC, 23, 3, C_PG)
    a('s_lshl_b32 s57, s2, 3'); a(f's_add_u32 s57, s57, {WS_F2}')
    a('s_mov_b64 exec, 1')
    a('buffer_store_dwordx2 v[62:63], v46, s[44:47], s57 offen sc1')
    a('s_mov_b64 exec, -1')
    a('G2E:')
    a(f's_mov_b32 s71, {SPIN_MAX}')
    a('PA:')
    a(f's_mov_b32 s57, {WS_F2}')
    a('buffer_load_dwordx4 v[64:67], v6, s[44:47], s57 offen sc1')
    a('buffer_load_dwordx4 v[68:71], v6, s[44:47], s57 offen offset:1024 sc1')
    a('s_waitcnt vmcnt(0)')
    for i in range(8): a(f'v_xor_b32 v{64+i}, v{64+i}, v{62+(i&1)}')
    for i in range(1, 8): a(f'v_or_b32 v64, v64, v{64+i}')
    a('v_cmp_ne_u32 vcc, 0, v64')
    a('s_cmp_eq_u64 vcc, 0'); a('s_cbranch_scc1 PAD')
    a('s_sub_u32 s71, s71, 1'); a('s_cmp_eq_u32 s71, 0'); a('s_cbranch_scc1 PAD')
    a('s_sleep 8'); a('s_branch PA')
    a('PAD:')
    lds_inc(a, VC, V1, C_F2)
    a('s_branch PAE')
    a('PAO:')
    lds_spin(a, VC, 23, 1, C_F2)
    a('PAE:')
    st(7)
    srd(a, 36, 76, 4 << 20)
    a('s_lshl_b32 s57, s49, 8'); a('v_lshl_add_u32 v49, v2, 2, s57')
    for c in range(8):
        a(f's_mov_b32 s59, {WS_G + 1024*c}'); a(f'buffer_load_dword v{96+c}, v49, s[44:47], s59 offen sc1')
    VF, VO = 50, 51
    a('v_lshrrev_b32 v10, 2, v4'); a(f'v_mul_u32_u24 v10, {TS}, v10'); a('v_and_b32 v11, 3, v2'); a('v_lshl_add_u32 v10, v11, 3, v10')
    a('v_mul_u32_u24 v11, 40, v5'); a('v_add_u32 v10, v10, v11')
    a('s_mul_i32 s59, s49, 160'); a(f's_add_u32 s59, s59, {TA}'); a(f'v_add_u32 v{VF}, s59, v10')
    a('s_lshl_b32 s59, s49, 17'); a('s_lshl_b32 s60, s30, 1'); a('s_add_u32 s59, s59, s60')
    a(f'v_lshlrev_b32 v10, 11, v2'); a(f'v_add_u32 v{VO}, s59, v10')
    a('s_waitcnt vmcnt(0)')
    F = 64
    for gi, g2 in enumerate(GROUPS):
        lds_spin(a, VC, 23, 4, C_A + 4*gi)
        lds_spin(a, VC, 23, 4, C_B + 4*gi)
        c0 = min(g2); npass = len(g2)
        for p in range(npass):
            off = 640 * (c0 + p)
            a(f'ds_read_b64_tr_b16 v[{F+4*p}:{F+4*p+1}], v{VF} offset:{off}')
            a(f'ds_read_b64_tr_b16 v[{F+4*p+2}:{F+4*p+3}], v{VF} offset:{off + 4*TS}')
        for p in range(npass):
            a(f's_waitcnt lgkmcnt({2*(npass-1-p)})')
            A0, A1, B0, B1 = F+4*p, F+4*p+1, F+4*p+2, F+4*p+3
            G = 96 + c0 + p
            a(f'v_lshlrev_b32 v34, 16, v{G}'); a(f'v_and_b32 v35, 0xffff0000, v{G}')
            a(f'v_lshlrev_b32 v26, 16, v{A0}'); a(f'v_and_b32 v27, 0xffff0000, v{A0}')
            a(f'v_lshlrev_b32 v28, 16, v{A1}'); a(f'v_and_b32 v29, 0xffff0000, v{A1}')
            a(f'v_lshlrev_b32 v30, 16, v{B0}'); a(f'v_and_b32 v31, 0xffff0000, v{B0}')
            a(f'v_lshlrev_b32 v32, 16, v{B1}'); a(f'v_and_b32 v33, 0xffff0000, v{B1}')
            for i in range(4): a(f'v_mul_f32 v{26+i}, v{26+i}, v34')
            for i in range(4): a(f'v_fmac_f32 v{26+i}, v{30+i}, v35')
            a(f'v_cvt_pk_bf16_f32 v{A0}, v26, v27'); a(f'v_cvt_pk_bf16_f32 v{A1}, v28, v29')
            a(f's_mov_b32 s59, {256*(c0+p) * 2048}')
            a(f'buffer_store_dwordx2 v[{A0}:{A1}], v{VO}, s[36:39], s59 offen')
        F = 104 if F == 64 else 64
        if gi == 0: st(8)
    st(9)
    a('s_branch KFIN')
    a('CONVP:')
    st.h = False
    a(f's_mul_i32 s67, s48, {REG}')
    a('v_lshrrev_b32 v27, 3, v2'); a('v_mul_u32_u24 v27, 1152, v27'); a('v_and_b32 v28, 7, v2')
    a('v_lshl_add_u32 v27, v28, 4, v27'); a(f'v_add_u32 v27, {QOFF}, v27')
    a('v_and_b32 v28, 1, v2'); a('v_lshlrev_b32 v28, 4, v28')
    a('v_cmp_gt_u32 vcc, 32, v2'); a('v_cndmask_b32 v27, v28, v27, vcc'); a('v_add_u32 v8, s67, v27')
    for r in range(16, 20): a(f'v_mov_b32 v{r}, 0')
    a('ds_write_b128 v8, v[16:19]')
    a('s_waitcnt lgkmcnt(0)')
    a('s_barrier')
    st(1)
    a('s_mov_b64 s[64:65], 1')
    a('v_lshlrev_b32 v6, 4, v2')
    a(f'v_mov_b32 v25, {CNT}'); a('v_mov_b32 v21, 1')
    a('v_cvt_f32_u32 v46, v4'); a('v_cvt_f32_u32 v47, v4')
    a('s_mov_b32 s52, 0x00010001'); a('s_mov_b32 s53, 0x00010001')
    a('s_mov_b32 s54, 0xff00ff00'); a('s_mov_b32 s55, 0xff00ff00')
    a(f's_mov_b32 s62, {LOG2E}'); a(f's_mov_b32 s63, {INV2PI}')
    a(f's_mul_i32 s57, s48, 1280'); a(f's_add_u32 s57, s57, {PAR}')
    a('v_lshl_add_u32 v32, v2, 4, s57')
    a('s_sub_u32 s58, s57, 0'); a('v_lshl_add_u32 v40, v5, 6, s58')
    a('s_add_u32 s57, s57, 1024'); a('v_lshl_add_u32 v33, v2, 2, s57'); a('v_lshl_add_u32 v41, v5, 4, s57')
    a(f's_waitcnt vmcnt({2 if TOUCH else 1})')
    st(6)
    for r in (10, 11, 12, 13, 14, 15): a(f'v_lshlrev_b32 v{r}, 16, v{r}')
    a('v_mul_f32 v14, s62, v14'); a('v_mul_f32 v10, s62, v10')
    a('v_exp_f32 v14, v14'); a('v_exp_f32 v10, v10')
    a('v_cvt_pk_bf16_f32 v14, v14, v14'); a('v_cvt_pk_bf16_f32 v10, v10, v10')
    a('v_lshlrev_b32 v14, 16, v14'); a('v_lshlrev_b32 v10, 16, v10')
    a('v_mul_f32 v28, v10, v14'); a('v_mul_f32 v29, v11, v14')
    a('v_mul_f32 v28, s62, v28'); a('v_sub_f32 v28, 0, v28'); a('v_mul_f32 v29, s63, v29')
    a('v_add_f32 v14, v14, v14'); a('v_mul_f32 v30, v12, v14'); a('v_mul_f32 v31, v13, v14')
    a('ds_write_b128 v32, v[28:31]')
    a('s_mov_b32 s58, 0x45000000')
    a('v_mul_f32 v34, s58, v28'); a('v_mul_f32 v35, s58, v29')
    a('v_exp_f32 v34, v34'); a('v_fract_f32 v35, v35'); a('v_cos_f32 v36, v35'); a('v_sin_f32 v37, v35')
    a('v_mul_f32 v36, v36, v34'); a('v_mul_f32 v37, v37, v34')
    a('v_mul_f32 v38, v31, v37'); a('v_mul_f32 v39, v31, v36')
    a('v_fma_f32 v38, v30, v36, -v38'); a('v_fma_f32 v39, -v30, v37, -v39')
    a('v_cvt_pk_bf16_f32 v38, v38, v39')
    a('ds_write_b32 v33, v38')
    a('s_waitcnt lgkmcnt(0)')
    st(7)
    KACC, KB = 48, 64
    srd(a, 36, 26, 4 << 20)
    def mid():
        a(f's_lshl_b32 s57, s50, 2'); a('s_add_u32 s57, s57, s69'); a(f's_cmp_lg_u32 s57, {4 + SKIT}'); a('s_cbranch_scc1 NOSK')
        a('s_lshl_b32 s62, s31, 12')
        for i in range(4):
            a(f's_add_u32 m0, s67, {32 + i*1024}'); a(f's_add_u32 s63, s62, {i*1024}')
            a('buffer_load_dwordx4 v6, s[36:39], s63 offen lds')
        a('NOSK:')
    kgen_loop(a, 40, KACC, KB, mid)
    st(2)
    a(f's_lshl_b32 s57, s49, 12'); a(f's_add_u32 s57, s57, {PART}'); a('v_lshl_add_u32 v40, v2, 4, s57')
    a('s_lshl_b32 s57, s49, 2'); a(f'v_add_u32 v41, s57, v{VC}')
    a('s_nop 7')
    a('s_cmp_eq_u32 s50, 0'); a('s_cbranch_scc1 AEXP')
    for b in range(4): a(f'ds_write_b128 v40, v[{KACC+4*b}:{KACC+4*b+3}] offset:{b*1024}')
    a('s_waitcnt lgkmcnt(0)')
    lds_inc(a, 41, V1, C_PART)
    a('s_waitcnt vmcnt(0)')
    a('s_add_u32 s57, s67, 32'); a('v_mov_b32 v10, s57')
    a('ds_read_u16 v11, v10'); a('s_waitcnt lgkmcnt(0)')
    a('v_lshlrev_b32 v11, 16, v11'); a('v_lshlrev_b32 v9, 16, v9'); a('v_add_f32 v11, v11, v9')
    a('v_cvt_pk_bf16_f32 v11, v11, v11'); a('ds_write_b16 v10, v11')
    a('s_branch CSET')
    a('AEXP:')
    lds_spin(a, 41, 42, 1, C_PART)
    for b in range(4): a(f'ds_read_b128 v[{64+4*b}:{64+4*b+3}], v40 offset:{b*1024}')
    a('s_waitcnt lgkmcnt(0)')
    for i in range(16): a(f'v_add_f32 v{KACC+i}, v{KACC+i}, v{64+i}')
    a('v_mov_b32 v84, 0'); a('v_cndmask_b32 v84, v84, v15, s[64:65]'); a(f'v_add_f32 v{KACC}, v{KACC}, v84')
    a('s_add_u32 s57, s67, 32'); a('v_mov_b32 v85, s57')
    gen_expand(a, KACC, 85, 88)
    a('CSET:')
    st(3)
    VA, VB, VIDX, VZERO, VT_, VX = 16, 17, 18, 19, 20, 22
    a('v_lshrrev_b32 v10, 2, v4'); a('v_and_b32 v11, 3, v2'); a('v_sub_u32 v11, v11, v10'); a('v_lshlrev_b32 v11, 3, v11')
    a('v_lshlrev_b32 v10, 6, v5'); a('v_sub_u32 v11, v11, v10'); a('s_add_u32 s59, s67, 224'); a(f'v_add_u32 v{VA}, s59, v11')
    a('v_lshlrev_b32 v10, 3, v4'); a('v_lshl_add_u32 v10, v5, 4, v10'); a(f's_add_u32 s59, s67, {QOFF + 8}'); a(f'v_add_u32 v{VB}, s59, v10')
    a('v_add_u32 v10, -1, v4'); a('v_and_b32 v10, 15, v10'); a('v_add_u32 v10, 48, v10')
    a('v_add_u32 v11, -16, v2'); a('v_cmp_gt_u32 vcc, 16, v2'); a('v_cndmask_b32 v10, v11, v10, vcc'); a(f'v_lshlrev_b32 v{VIDX}, 2, v10')
    a(f'v_mov_b32 v{VZERO}, 0')
    a(f's_mul_i32 s59, s49, {TS}'); a(f's_mul_i32 s60, s50, {4*TS}'); a('s_add_u32 s59, s59, s60'); a(f's_add_u32 s59, s59, {TA}')
    a('v_mul_u32_u24 v10, 40, v4'); a('v_lshl_add_u32 v10, v5, 3, v10'); a(f'v_add_u32 v{VT_}, s59, v10')
    a(f's_mul_i32 s59, s49, {REG}'); a(f's_add_u32 s59, s59, {QOFF + 128}')
    a('v_lshlrev_b32 v10, 3, v4'); a('v_lshl_add_u32 v10, v5, 1, v10'); a(f'v_add_u32 v{VX}, s59, v10')
    AF, CACC, BR, NB, TMP, XR = 32, 96, 116, NBR, 140, 150
    a('s_cmp_eq_u32 s50, 0'); a('s_cbranch_scc0 CONVB')
    q = DSQ(a)
    def epiA(gi, grp, acc):
        q.waitall()
        for j, c in enumerate(grp):
            r = XR + 2*(j % 4)
            a(f'v_cvt_pk_bf16_f32 v{r}, v{acc(c)}, v{acc(c)+1}'); a(f'v_cvt_pk_bf16_f32 v{r+1}, v{acc(c)+2}, v{acc(c)+3}')
            a(f'ds_write_b64 v{VT_}, v[{r}:{r+1}] offset:{640*c}')
        a('s_waitcnt lgkmcnt(0)')
        lds_inc(a, VC, V1, C_A + 4*gi); q.n += 1
    def preA():
        lds_spin(a, VC, 23, 4, C_QA); st(4)
    conv(a, q, GROUPS, AF, CACC, BR, NB, TMP, VA, VB, VIDX, VZERO, epiA, preA)
    st(5)
    a('s_branch KFIN')
    a('CONVB:')
    if BPRIO: a(f's_setprio {BPRIO}')
    q2 = DSQ(a)
    def epiB(gi, grp, acc):
        q2.waitall()
        if gi == 0: lds_spin(a, VC, 23, 4, C_QA)
        for j0 in range(0, len(grp), 4):
            sub = grp[j0:j0+4]
            for j, c in enumerate(sub):
                for ph in range(4): q2.issue(f'ds_read_u16_d16_hi v{XR+4*j+ph}, v{VX} offset:{ph*1152+128*c}')
                if j % 2 == 1: q2.wait(q2.n - 4)
            q2.waitall()
            for j, c in enumerate(sub):
                for i in range(4): a(f'v_and_b32 v{XR+4*j+i}, 0xffff0000, v{XR+4*j+i}')
                for i in range(4): a(f'v_mul_f32 v{XR+4*j+i}, v{XR+4*j+i}, v{acc(c)+i}')
                a(f'v_cvt_pk_bf16_f32 v{XR+4*j}, v{XR+4*j}, v{XR+4*j+1}'); a(f'v_cvt_pk_bf16_f32 v{XR+4*j+1}, v{XR+4*j+2}, v{XR+4*j+3}')
                a(f'ds_write_b64 v{VT_}, v[{XR+4*j}:{XR+4*j+1}] offset:{640*c}')
            a('s_waitcnt lgkmcnt(0)')
        lds_inc(a, VC, V1, C_B + 4*gi); q2.n += 1
    def preB():
        lds_spin(a, VC, 23, 4, C_QB); st(4)
    conv(a, q2, GROUPS, AF, CACC, BR, NB, TMP, VA, VB, VIDX, VZERO, epiB, preB, PDROP)
    st(5)
    a('KFIN:')
    st(10); st.dump(11)
    a('KEND:')
    a('s_endpgm')
    return a, 168, LDS

SKIT = int(os.environ.get('SKIT', '3'))
TOUCH = int(os.environ.get('TOUCH', '0'))
MAP = int(os.environ.get('MAP', '0'))
STG = int(os.environ.get('STG', '1'))
XW = int(os.environ.get('XW', '0'))
PDROP = eval(os.environ.get('PDROP', 'None'))
QST = 256 if STG else 1152
STGB = PART + 16384
ROT = int(os.environ.get('ROT', '0'))
BPRIO = int(os.environ.get('BPRIO', '1'))
def build(path):
    hdr = open('cdna_kernels/' + NAME + '.s.ref').read().split('\n')
    head = [l for l in hdr[:18] if l.startswith(';') and '@launch' not in l and 'Override' not in l and 'grid=ceil' not in l]
    k, nv, lds = gen()
    out = head[:]
    out.append(f'; @launch grid=(256,1,1) block=(768,1,1) lds={lds}')
    out.append('.amdgcn_target "amdgcn-amd-amdhsa--gfx950"'); out.append('.text')
    out.append(f'.globl {KN}'); out.append('.p2align 8'); out.append(f'.type {KN},@function')
    lines, nn = k.finalize(); print('instrs', len(lines), 'nops', nn)
    out += lines
    out.append('.section .rodata,"a"'); out.append(kd(KN, nv))
    open(path, 'w').write('\n'.join(out) + '\n')

if __name__ == '__main__':
    if len(sys.argv) > 2:
        gen1.STAMPS = True
        if sys.argv[2] == 'c': gen1.STAMPOP = 's_memtime'
    build(sys.argv[1])
```

```python
import sys
import gen1
from asmlib import Asm
from gen1 import srd, LOG2E, INV2PI, NAME, gen_expand, WS_QU, WS_QKV, WS_G
from gen2 import DSQ, kd
from gen4 import kgen_step, lds_spin, SPIN_MAX

WS_F1 = (12 << 20) + 8192
WS_F2 = WS_F1 + 4096
WS_SIZE = WS_F2 + 2048
WS_DBG = 13 << 20
REG = 8736; QOFF = 4128
CNT = 8 * REG
XT = CNT + 128
VT = XT + 16384
KT = VT + 16384
PAR = KT + 17408
PART = PAR + 10240
LDS = PART + 16384 + 16384
TS = 5184
TA = XT; TB = XT + 4 * TS
KN = 'gated_mix__ssm_conv_s4d__ssm_conv_h3__prompt_kernel'
import os
GROUPS = eval(os.environ.get('GRP', '((0,1,2,3,4),(5,6,7))'))
NBR = int(os.environ.get('NB', '6'))
SPB = 6 if len(GROUPS) <= 2 else 4
C_TKV, C_TX, C_PKV, C_PU, C_FKV, C_FU, C_QB, C_QA, C_PG, C_F2, C_A, C_B, C_PART = 0, 4, 8, 12, 16, 20, 24, 28, 32, 36, 40, 56, 72

DIAG = os.environ.get('DIAG')
class St:
    def __init__(self, a): self.a = a; self.h = False
    def d(self, n):
        if DIAG and gen1.STAMPS: self.a(f'{gen1.STAMPOP} s[{80+2*n}:{81+2*n}]')
    def __call__(self, n):
        if DIAG and self.h and 5 <= n <= 9: return
        if gen1.STAMPS: self.a(f'{gen1.STAMPOP} s[{80+2*n}:{81+2*n}]')
    def dump(self, n):
        if not gen1.STAMPS: return
        a = self.a
        a('s_waitcnt vmcnt(0) lgkmcnt(0)')
        a('s_mul_i32 s66, s2, 12'); a('s_add_u32 s66, s66, s48'); a('s_lshl_b32 s66, s66, 7'); a(f's_add_u32 s66, s66, {WS_DBG}')
        a('v_mov_b32 v1, s66'); a('s_mov_b64 exec, 1')
        for i in range(n):
            a(f'v_mov_b32 v2, s{80+2*i}'); a(f'v_mov_b32 v3, s{81+2*i}')
            a(f'global_store_dwordx2 v1, v[2:3], s[28:29] offset:{8*i}')
        a('s_mov_b64 exec, -1')

def lds_inc(a, VC, V1, off):
    a('s_mov_b64 exec, 1'); a(f'ds_add_u32 v{VC}, v{V1} offset:{off}'); a('s_mov_b64 exec, -1')

def conv(a, q, groups, AF, ACC, BR, NB, TMP, VA, VB, VIDX, VZERO, epilogue, pre, pdrop=None):
    items = []
    for gi, grp in enumerate(groups):
        for ph in (3, 2, 1, 0):
            for mu in range(-1, 2 * max(grp) + 1):
                items.append((gi, ph, mu, [c for c in grp if mu <= 2 * c]))
    c0of = {}
    for grp in groups:
        for c in grp: c0of[c] = min(grp)
    def acc(c): return ACC + 4 * (c - c0of[c])
    btag = {}; atag = {}
    def loadB(i):
        gi, ph, mu, _ = items[i]
        if os.environ.get('NOB') and i >= NB:
            btag[i] = 0; return
        s = BR + 4 * (i % NB); off = ph * 1152 + 64 * (mu + 1)
        q.issue(f'ds_read_b64 v[{s}:{s+1}], v{VB} offset:{off}')
        btag[i] = q.issue(f'ds_read_b64 v[{s+2}:{s+3}], v{VB} offset:{off+8}')
    def loadA(m):
        r = AF + 4 * m
        q.issue(f'ds_read_b64_tr_b16 v[{r}:{r+1}], v{VA} offset:{256*m+32}')
        atag[m] = q.issue(f'ds_read_b64_tr_b16 v[{r+2}:{r+3}], v{VA} offset:{256*m}')
    aorder = []
    for gi, ph, mu, cs in items:
        for c in cs:
            m = 2 * c - mu
            if m not in aorder: aorder.append(m)
    first_use = {}
    for i, (gi, ph, mu, cs) in enumerate(items):
        for c in cs: first_use.setdefault(2 * c - mu, i)
    apend = list(aorder)
    def tmpreg(c, ph):
        for gi, grp in enumerate(groups):
            if c == max(grp) and gi < len(groups) - 1: return TMP + SPB + 3 * gi + (ph - 1)
        return TMP + (c - c0of[c])
    pend = []; nm = [0]
    def shift_bperm(e):
        c, ph = e['c'], e['ph']
        e['tag'] = q.issue(f'ds_bpermute_b32 v{tmpreg(c,ph)}, v{VIDX}, v{acc(c)+3}')
        e['stage'] = 1; e['since'] = nm[0]
    def shift_fin(e):
        c, ph = e['c'], e['ph']
        q.wait(e['tag'])
        r = acc(c)
        prev = f'v{tmpreg(c-1,ph)}' if c > 0 else f'v{VZERO}'
        a(f'v_mov_b32 v{r+3}, v{r+2}'); a(f'v_mov_b32 v{r+2}, v{r+1}'); a(f'v_mov_b32 v{r+1}, v{r}')
        a(f'v_cndmask_b32 v{r}, v{tmpreg(c,ph)}, {prev}, s[64:65]')
        e['stage'] = 2
    def progress(force_c=None):
        for e in list(pend):
            if e['stage'] == 0 and (nm[0] - e['since'] >= 6 or force_c is not None): shift_bperm(e)
            elif e['stage'] == 1 and (nm[0] - e['since'] >= 6 or force_c is not None):
                shift_fin(e); pend.remove(e)
            if force_c is not None and e['c'] == force_c and e in pend:
                if e['stage'] == 0: shift_bperm(e)
                shift_fin(e); pend.remove(e)
            if e in pend and force_c is None: break
            if force_c is not None and e['c'] == force_c: break
    a('s_waitcnt lgkmcnt(0)')
    while apend:
        loadA(apend.pop(0))
        if q.n - q.done > 12: q.wait(q.n - 8)
    q.waitall()
    pre()
    nbl = 0
    for i in range(2): loadB(i)
    nbl = 2
    for i, (gi, ph, mu, cs) in enumerate(items):
        cs = [c for c in cs if not any(e['c'] == c for e in pend)] + [c for c in cs if any(e['c'] == c for e in pend)]
        if pdrop is not None and (gi, ph, mu) == (pdrop[0], pdrop[1], -1): a(f's_setprio {pdrop[2]}')
        if nbl <= i: loadB(nbl); nbl += 1
        for c in cs:
            m = 2 * c - mu
            while m not in atag:
                if q.n - q.done > 12: q.wait(q.n - 8)
                loadA(apend.pop(0))
            k = 0
            while apend and first_use[apend[0]] <= i + 12 and (q.n - q.done) <= 11 and k < 2:
                loadA(apend.pop(0)); k += 1
            if any(e['c'] == c for e in pend): progress(force_c=c)
            q.wait(btag[i]); q.wait(atag[m])
            s = BR + 4 * (i % NB)
            cin = '0' if (ph == 3 and mu == -1) else f'v[{acc(c)}:{acc(c)+3}]'
            a(f'v_mfma_f32_16x16x32_bf16 v[{acc(c)}:{acc(c)+3}], v[{AF+4*m}:{AF+4*m+3}], v[{s}:{s+3}], {cin}')
            nm[0] += 1
            if mu == 2 * c and ph > 0 and not os.environ.get('NOSHIFT'): pend.append(dict(c=c, ph=ph, stage=0, since=nm[0], tag=None))
            progress()
            if nbl < min(i + NB, len(items)) and (q.n - q.done) <= 11:
                loadB(nbl); nbl += 1
        if (i + 1 == len(items)) or items[i + 1][0] != gi:
            assert not pend
            epilogue(gi, groups[gi], acc)


def kgen_loop(a, PARB, acc, base, mid):
    P = base; Z = base + 20; X = base + 28; T = base + 36; Y = base + 44; XB = base + 60
    E = range(4)
    def z(e): return f'v[{Z+2*e}:{Z+2*e+1}]'
    def x(e): return f'v[{X+2*e}:{X+2*e+1}]'
    def t(e): return f'v[{T+2*e}:{T+2*e+1}]'
    def rd():
        for e in E: a(f'ds_read_b128 v[{P+4*e}:{P+4*e+3}], v{PARB} offset:{e*16}')
        a(f'ds_read_b128 v[{P+16}:{P+19}], v{PARB+1}')
    for i in range(16): a(f'v_mov_b32 v{acc+i}, 0')
    rd()
    a('s_mov_b32 s69, 0')
    a('KGL:')
    a(f'v_add_u32 v{PARB}, 256, v{PARB}'); a(f'v_add_u32 v{PARB+1}, 64, v{PARB+1}')
    a('s_waitcnt lgkmcnt(0)')
    for e in E: a(f'v_pk_mul_f32 {t(e)}, v[{P+4*e}:{P+4*e+1}], v[46:47]')
    for e in E: a(f'v_exp_f32 v{T+2*e}, v{T+2*e}')
    for e in E: a(f'v_fract_f32 v{T+2*e+1}, v{T+2*e+1}')
    for e in E: a(f'v_cos_f32 v{Z+2*e}, v{T+2*e+1}')
    for e in E: a(f'v_sin_f32 v{Z+2*e+1}, v{T+2*e+1}')
    for e in E: a(f'v_pk_mul_f32 {z(e)}, {z(e)}, {t(e)} op_sel:[0,0] op_sel_hi:[1,0]')
    def sqall():
        for e in E: a(f'v_pk_mul_f32 {t(e)}, {z(e)}, {z(e)} op_sel:[0,0] op_sel_hi:[0,1]')
        for e in E: a(f'v_pk_fma_f32 {z(e)}, {z(e)}, {z(e)}, {t(e)} op_sel:[1,1,0] op_sel_hi:[0,1,1] neg_lo:[1,0,0]')
    for b in range(4):
        for e in E: a(f'v_cvt_pk_bf16_f32 v{Y+4*b+e}, v{Z+2*e}, v{Z+2*e+1}')
        sqall()
    for e in E: a(f'v_pk_mul_f32 {t(e)}, v[{P+4*e+2}:{P+4*e+3}], {z(e)} op_sel:[1,1] op_sel_hi:[1,0]')
    for e in E: a(f'v_pk_fma_f32 {x(e)}, v[{P+4*e+2}:{P+4*e+3}], {z(e)}, {t(e)} op_sel:[0,0,0] op_sel_hi:[0,1,1] neg_lo:[0,0,1] neg_hi:[1,0,1]')
    for e in E: a(f'v_cvt_pk_bf16_f32 v{XB+e}, v{X+2*e}, v{X+2*e+1}')
    for b in range(1, 4):
        for e in E: a(f'v_pk_mul_f32 {t(e)}, {x(e)}, {z(e)} op_sel:[0,0] op_sel_hi:[1,0]')
        for e in E: a(f'v_pk_fma_f32 {x(e)}, {x(e)}, {z(e)}, {t(e)} op_sel:[1,1,0] op_sel_hi:[0,1,1] neg_hi:[1,0,0]')
        for e in E: a(f'v_cvt_pk_bf16_f32 v{XB+4*b+e}, v{X+2*e}, v{X+2*e+1}')
        if b < 3: sqall()
    for e in E: a(f'v_cndmask_b32 v{XB+12+e}, v{XB+12+e}, v{P+16+e}, s[52:53]')
    rd()
    for b in range(4):
        a(f'v_mfma_f32_16x16x32_bf16 v[{acc+4*b}:{acc+4*b+3}], v[{Y+4*b}:{Y+4*b+3}], v[{XB+4*b}:{XB+4*b+3}], v[{acc+4*b}:{acc+4*b+3}]')
    mid()
    a('s_add_u32 s69, s69, 1'); a('s_cmp_lt_u32 s69, 4'); a('s_cbranch_scc1 KGL')
    a('s_waitcnt lgkmcnt(0)')

def gen():
    a = Asm(); st = St(a)
    VC, V1 = 25, 21
    a(f'{KN}:')
    a('s_cmp_ge_u32 s2, 256'); a('s_cbranch_scc1 KEND')
    st(0)
    a('s_load_dwordx4 s[20:23], s[0:1], 64')
    a('s_load_dwordx4 s[4:7], s[0:1], 0')
    a('s_load_dwordx4 s[24:27], s[0:1], 80')
    a('s_load_dwordx4 s[76:79], s[0:1], 112')
    a('s_load_dwordx4 s[8:11], s[0:1], 16')
    a('s_load_dwordx4 s[12:15], s[0:1], 32')
    a('s_load_dwordx2 s[16:17], s[0:1], 48')
    a('s_load_dwordx4 s[72:75], s[0:1], 96')
    a('s_load_dwordx2 s[28:29], s[0:1], 128')
    a('v_lshrrev_b32 v1, 6, v0'); a('v_and_b32 v2, 63, v0'); a('v_readfirstlane_b32 s48, v1')
    a('v_and_b32 v4, 15, v2'); a('v_lshrrev_b32 v5, 4, v2')
    a('s_and_b32 s49, s48, 3'); a('s_lshr_b32 s50, s48, 2')
    a('s_cmp_eq_u32 s50, 2'); a('s_cbranch_scc1 HELP')
    a('s_and_b32 s30, s2, 7'); a('s_lshl_b32 s30, s30, 5'); a('s_lshr_b32 s31, s2, 3'); a('s_add_u32 s30, s30, s31')
    a('s_lshl_b32 s30, s30, 2'); a('s_add_u32 s31, s30, s49')
    a('s_lshl_b32 s57, s31, 8'); a('s_lshl_b32 s58, s50, 7'); a('s_add_u32 s57, s57, s58')
    a('v_lshl_add_u32 v26, v2, 1, s57'); a('s_lshl_b32 s57, s31, 1'); a('v_mov_b32 v7, s57')
    a('s_waitcnt lgkmcnt(0)')
    a('global_load_ushort v10, v26, s[6:7]'); a('global_load_ushort v11, v26, s[8:9]')
    a('global_load_ushort v14, v7, s[14:15]')
    a('global_load_ushort v12, v26, s[10:11]'); a('global_load_ushort v13, v26, s[12:13]')
    a('global_load_ushort v15, v7, s[16:17]')
    a('global_load_ushort v9, v7, s[72:73]')
    if TOUCH:
        a('s_lshl_b32 s57, s48, 2'); a('s_add_u32 s57, s57, 0')
        a('s_and_b32 s58, s2, 15'); a('s_lshl_b32 s58, s58, 18')
        a('s_cmp_eq_u32 s48, 0'); a('s_cbranch_scc1 TC0')
        a('s_cmp_eq_u32 s48, 1'); a('s_cbranch_scc1 TC1')
        a('s_cmp_eq_u32 s48, 2'); a('s_cbranch_scc1 TC2')
        a('s_cmp_eq_u32 s48, 3'); a('s_cbranch_scc1 TC3')
        a('s_branch TCD')
        a('TC0:')
        a('v_and_b32 v27, 1, v2'); a('v_lshlrev_b32 v27, 22, v27')
        a('s_lshl_b32 s59, s30, 12'); a('v_mov_b32 v28, s58'); a('v_mov_b32 v29, s59')
        a('v_cmp_gt_u32 vcc, 2, v2'); a('v_cndmask_b32 v28, v29, v28, vcc'); a('v_add_u32 v27, v27, v28')
        a(f'v_mov_b32 v28, {WS_F1}'); a('v_cmp_gt_u32 vcc, 4, v2'); a('v_cndmask_b32 v27, v28, v27, vcc')
        a('s_mov_b64 exec, 31'); a('global_load_dword v164, v27, s[28:29]'); a('s_mov_b64 exec, -1')
        a('s_branch TCE')
        a('TC1:')
        a('v_lshlrev_b32 v27, 18, v4'); a('s_mov_b64 exec, 0xffff'); a('global_load_dword v164, v27, s[76:77]'); a('s_mov_b64 exec, -1')
        a('s_branch TCE')
        a('TC2:')
        a('s_lshl_b32 s59, s30, 12'); a('v_mov_b32 v27, s59'); a('s_mov_b64 exec, 1'); a('global_load_dword v164, v27, s[26:27]'); a('s_mov_b64 exec, -1')
        a('s_branch TCE')
        a('TC3:')
        a('s_lshr_b32 s59, s2, 4'); a('s_lshl_b32 s59, s59, 18'); a('v_mov_b32 v27, s59'); a('s_mov_b64 exec, 1'); a('global_load_dword v164, v27, s[4:5]'); a('s_mov_b64 exec, -1')
        a('s_branch TCE')
        a('TCD:')
        a('v_lshlrev_b32 v27, 2, v2'); a('global_load_dword v164, v27, s[74:75]')
        a('TCE:')
    a('s_branch CONVP')
    a('HELP:')
    st.h = True
    if MAP:
        a('s_lshr_b32 s51, s2, 3'); a('s_and_b32 s51, s51, 15')
        a('s_and_b32 s56, s2, 7'); a('s_lshr_b32 s57, s2, 7'); a('s_lshl_b32 s57, s57, 3'); a('s_add_u32 s56, s56, s57')
    else:
        a('s_and_b32 s51, s2, 15'); a('s_lshr_b32 s56, s2, 4')
    a('v_lshrrev_b32 v34, 3, v2'); a('v_and_b32 v35, 7, v2')
    a('v_and_b32 v36, 1, v5'); a('v_lshlrev_b32 v36, 1, v36')
    a('s_and_b32 s57, s49, 1'); a('s_lshl_b32 s57, s57, 2')
    a('v_or_b32 v37, s57, v36'); a('v_xor_b32 v37, v37, v35'); a('v_lshlrev_b32 v37, 4, v37'); a('v_lshl_add_u32 v37, v34, 11, v37')
    a('s_lshl_b32 s57, s56, 18'); a('s_lshl_b32 s58, s49, 16'); a('s_add_u32 s57, s57, s58')
    a('s_lshl_b32 s58, s51, 7'); a('s_add_u32 s60, s57, s58')
    a('s_lshl_b32 s61, s49, 12')
    a(f's_sub_u32 s62, s60, {4*2048}')
    for i in range(4):
        a(f's_add_u32 s57, s62, {i*8*2048}'); a(f'v_add_u32 v{26+i}, s57, v37')
    a('s_lshl_b32 s57, s51, 9'); a('s_lshl_b32 s58, s49, 7'); a('s_add_u32 s57, s57, s58'); a('v_lshl_add_u32 v43, v4, 3, s57')
    a('s_waitcnt lgkmcnt(0)')
    srd(a, 36, 20, 4 << 20)
    srd(a, 40, 78, 256)
    a('v_mov_b32 v46, 0')
    a('s_or_b32 s57, s2, s49'); a('s_cmp_lg_u32 s57, 0'); a('s_cbranch_scc1 NONW')
    a('s_memrealtime s[68:69]'); a('s_waitcnt lgkmcnt(0)'); a('s_or_b32 s68, s68, 1')
    a('v_mov_b32 v54, s68'); a('v_mov_b32 v55, s69'); a('s_mov_b64 exec, 1')
    a('buffer_store_dwordx2 v[54:55], v46, s[40:43], 0 offen sc1'); a('s_mov_b64 exec, -1')
    a('NONW:')
    srd(a, 32, 22, 4 << 20)
    a('global_load_dwordx2 v[32:33], v43, s[24:25]')
    for i in range(4):
        a(f's_add_u32 m0, s61, {KT + i*1024}'); a('s_nop 0')
        a(f'buffer_load_dwordx4 v{26+i}, s[36:39], 0 offen lds')
    a('s_cmp_lg_u32 s49, 3'); a('s_cbranch_scc1 NOX')
    a('v_xor_b32 v44, v36, v35'); a('v_lshlrev_b32 v44, 4, v44'); a('v_lshl_add_u32 v44, v34, 11, v44')
    a('s_lshl_b32 s57, s56, 18'); a(f's_add_u32 s57, s57, {124*2048}'); a('s_lshl_b32 s58, s51, 7'); a('s_add_u32 s57, s57, s58')
    a(f's_mov_b32 m0, {KT + 128*128}'); a('s_nop 0')
    a('buffer_load_dwordx4 v44, s[36:39], s57 offen lds')
    a('NOX:')
    for i in range(4):
        a(f's_add_u32 s57, s60, {i*8*2048}'); a(f's_add_u32 m0, s61, {VT + i*1024}')
        a('buffer_load_dwordx4 v37, s[32:35], s57 offen lds')
    st(1)
    a(f'v_mov_b32 v25, {CNT}'); a('v_mov_b32 v21, 1')
    for r in range(12, 16): a(f'v_mov_b32 v{r}, 0')
    a('v_and_b32 v10, 7, v2'); a('v_lshlrev_b32 v10, 4, v10'); a(f'v_add_u32 v10, {CNT}, v10')
    a('ds_write_b128 v10, v[12:15]')
    a('s_waitcnt lgkmcnt(0)')
    a('s_barrier')
    srd(a, 44, 28, WS_SIZE)
    a('s_mov_b64 s[64:65], 1')
    a('v_lshlrev_b32 v6, 4, v2')
    a('s_and_b32 s30, s2, 7'); a('s_lshl_b32 s30, s30, 5'); a('s_lshr_b32 s31, s2, 3'); a('s_add_u32 s30, s30, s31')
    a('s_lshl_b32 s30, s30, 2'); a('s_add_u32 s31, s30, s49')
    a('v_lshrrev_b32 v46, 2, v4'); a('v_and_b32 v47, 3, v2'); a('v_lshrrev_b32 v48, 1, v47')
    a('s_lshl_b32 s57, s49, 1'); a('v_add_u32 v48, s57, v48')
    a('v_lshlrev_b32 v49, 1, v46'); a('v_xor_b32 v49, v48, v49'); a('v_lshlrev_b32 v49, 4, v49')
    a('v_and_b32 v50, 1, v47'); a('v_lshlrev_b32 v50, 3, v50')
    a('v_add_u32 v49, v49, v50'); a('v_lshl_add_u32 v49, v46, 9, v49'); a('v_lshl_add_u32 v49, v5, 12, v49'); a(f'v_add_u32 v49, {XT}, v49')
    a('v_lshrrev_b32 v51, 1, v46'); a('v_lshlrev_b32 v51, 1, v51'); a('v_and_b32 v52, 1, v5'); a('v_lshl_or_b32 v51, v52, 2, v51')
    a('v_xor_b32 v52, v48, v51'); a('v_xor_b32 v53, 4, v52')
    a('v_lshl_add_u32 v50, v46, 7, v50'); a('v_lshl_add_u32 v50, v5, 12, v50'); a(f'v_add_u32 v50, {VT}, v50')
    a('v_lshl_add_u32 v52, v52, 4, v50'); a('v_lshl_add_u32 v53, v53, 4, v50')
    a('s_lshl_b32 s57, s51, 18'); a('s_lshl_b32 s58, s49, 16'); a('s_add_u32 s57, s57, s58'); a('s_lshl_b32 s58, s56, 6')
    if STG:
        a('s_lshl_b32 s58, s56, 8'); a('s_add_u32 s57, s57, s58')
        a('v_lshlrev_b32 v54, 12, v5'); a('v_lshl_add_u32 v54, v4, 4, v54'); a('v_add_u32 v54, s57, v54')
        a('s_lshl_b32 s57, s49, 12'); a(f's_add_u32 s57, s57, {STGB}')
        for ph in range(4):
            a(f'v_or_b32 v{60}, {4*ph}, v5'); a('v_xor_b32 v60, v60, v4'); a('v_lshlrev_b32 v60, 4, v60'); a('v_lshl_add_u32 v60, v4, 8, v60')
            a(f'v_add_u32 v{(16,17,18,19)[ph]}, s57, v60')
        for i in range(4):
            a(f'v_add_u32 v60, {4*i}, v5'); a('v_xor_b32 v61, v60, v4'); a('v_lshlrev_b32 v61, 4, v61'); a('v_lshl_add_u32 v61, v60, 8, v61')
            a(f'v_add_u32 v{(7,8,9,22)[i]}, s57, v61')
    elif ROT:
        a('v_lshlrev_b32 v54, 4, v5'); a('v_add_u32 v54, s58, v54'); a('v_lshl_add_u32 v54, v4, 7, v54'); a('v_and_b32 v54, 1023, v54')
        a('v_lshl_add_u32 v54, v4, 12, v54'); a('v_add_u32 v54, s57, v54')
    else:
        a('s_add_u32 s57, s57, s58')
        a('v_lshlrev_b32 v54, 12, v4'); a('v_lshl_add_u32 v54, v5, 4, v54'); a('v_add_u32 v54, s57, v54')
    a('v_mov_b32 v46, 0')
    srd(a, 32, 4, 4 << 20)
    a('v_lshrrev_b32 v38, 5, v2'); a('v_lshlrev_b32 v38, 1, v38')
    for hb in range(2):
        a(f'v_or_b32 v39, {4*hb}, v38'); a('v_xor_b32 v39, v39, v35'); a('v_lshlrev_b32 v39, 4, v39'); a(f'v_lshl_add_u32 v{40+hb}, v34, 11, v39')
    a('s_setprio 2')
    a(f's_waitcnt vmcnt({XW})')
    for i in range(4):
        a(f's_add_u32 s57, s60, {i*8*2048}'); a(f's_add_u32 m0, s61, {XT + i*1024}')
        a(f'buffer_load_dwordx4 v{40+(i&1)}, s[32:35], s57 offen lds')
    a('s_waitcnt vmcnt(4)')
    lds_inc(a, VC, V1, C_TKV)
    a('v_lshlrev_b32 v56, 16, v32'); a('v_and_b32 v57, 0xffff0000, v32'); a('v_lshlrev_b32 v58, 16, v33'); a('v_and_b32 v59, 0xffff0000, v33')
    lds_spin(a, VC, 23, 4, C_TKV)
    st(2)
    U, KD, VD, KF = 64, 80, 98, 114
    for h in range(8): a(f'ds_read_b64_tr_b16 v[{KD+2*h}:{KD+2*h+1}], v52 offset:{KT - VT + 512*h}')
    a(f'ds_read_b64_tr_b16 v[{KD+16}:{KD+17}], v53 offset:{KT - VT + 512*8}')
    for h in range(6): a(f'ds_read_b64_tr_b16 v[{VD+2*h}:{VD+2*h+1}], v52 offset:{512*h}')
    a('s_waitcnt lgkmcnt(6)')
    for h in range(6, 8): a(f'ds_read_b64_tr_b16 v[{VD+2*h}:{VD+2*h+1}], v52 offset:{512*h}')
    for d in range(18):
        a(f'v_lshlrev_b32 v{KF+2*d}, 16, v{KD+d}'); a(f'v_and_b32 v{KF+2*d+1}, 0xffff0000, v{KD+d}')
    for hh in range(2):
        KV = 150
        ts = [4*y + 2*hh + p2 for p2 in range(2) for y in range(8)]
        for i, t in enumerate(ts): a(f'v_mul_f32 v{KV+i}, v56, v{KF+t+4}')
        for i, t in enumerate(ts): a(f'v_fmac_f32 v{KV+i}, v57, v{KF+t+3}')
        for i, t in enumerate(ts): a(f'v_fmac_f32 v{KV+i}, v58, v{KF+t+2}')
        for i, t in enumerate(ts): a(f'v_fmac_f32 v{KV+i}, v59, v{KF+t+1}')
        if hh == 0: a('s_waitcnt lgkmcnt(0)')
        for i, t in enumerate(ts):
            d = VD + 2*(t//4) + hh
            if t & 1: a(f'v_and_b32 v{26+(i%4)}, 0xffff0000, v{d}')
            else: a(f'v_lshlrev_b32 v{26+(i%4)}, 16, v{d}')
            a(f'v_mul_f32 v{KV+i}, v{KV+i}, v{26+(i%4)}')
        for p2 in range(2):
            O = 80 + 8*hh + 4*p2
            for jj in range(4): a(f'v_cvt_pk_bf16_f32 v{O+jj}, v{KV+8*p2+2*jj}, v{KV+8*p2+2*jj+1}')
            if STG:
                a(f'ds_write_b128 v{16 + 2*hh + p2}, v[{O}:{O+3}]')
            else:
                a(f's_mov_b32 s58, {WS_QKV + (2*hh+p2)*1024}')
                a(f'buffer_store_dwordx4 v[{O}:{O+3}], v54, s[44:47], s58 offen sc1')
        if hh == 0:
            a('s_cmp_lg_u32 s49, 0'); a('s_cbranch_scc1 NNL')
            a('buffer_load_dwordx2 v[62:63], v46, s[40:43], 0 offen sc1')
            a('NNL:')
    if STG:
        a('s_waitcnt lgkmcnt(0)')
        for i in range(4): a(f'ds_read_b128 v[{80+4*i}:{83+4*i}], v{(7,8,9,22)[i]}')
        for i in range(4):
            a(f's_waitcnt lgkmcnt({3-i})'); a(f's_mov_b32 s58, {WS_QKV + i*4*4096}')
            a(f'buffer_store_dwordx4 v[{80+4*i}:{83+4*i}], v54, s[44:47], s58 offen sc1')
    st.d(5)
    a('s_waitcnt vmcnt(5)')
    a('s_cmp_eq_u32 s49, 0'); a('s_cbranch_scc1 XL0'); a('s_waitcnt vmcnt(4)'); a('XL0:')
    st.d(6)
    lds_inc(a, VC, V1, C_TX)
    a('v_lshlrev_b32 v26, 5, v2')
    a('s_lshl_b32 s57, s2, 3'); a('s_lshl_b32 s58, s49, 1'); a('s_add_u32 s59, s57, s58'); a('s_lshl_b32 s57, s59, 11'); a('v_add_u32 v27, s57, v26')
    lds_spin(a, VC, 23, 4, C_TX)
    st.d(7)
    for ph in range(4):
        for h in range(2): a(f'ds_read_b64_tr_b16 v[{U+4*ph+2*h}:{U+4*ph+2*h+1}], v49 offset:{(16*h+ph)*128}')
    if STG:
        for ph in range(4):
            a(f's_waitcnt lgkmcnt({6-2*ph + ph})'); a(f'ds_write_b128 v{16+ph}, v[{U+4*ph}:{U+4*ph+3}]')
        a('s_waitcnt lgkmcnt(0)')
        for i in range(4): a(f'ds_read_b128 v[{U+4*i}:{U+4*i+3}], v{(7,8,9,22)[i]}')
        for i in range(4):
            a(f's_waitcnt lgkmcnt({3-i})'); a(f's_mov_b32 s58, {WS_QU + i*4*4096}')
            a(f'buffer_store_dwordx4 v[{U+4*i}:{U+4*i+3}], v54, s[44:47], s58 offen sc1')
    else:
      for ph in range(4):
        a(f's_waitcnt lgkmcnt({6-2*ph})')
        a(f's_mov_b32 s58, {WS_QU + ph*1024}')
        a(f'buffer_store_dwordx4 v[{U+4*ph}:{U+4*ph+3}], v54, s[44:47], s58 offen sc1')
    a('global_load_dwordx4 v[96:99], v27, s[4:5]'); a('global_load_dwordx4 v[100:103], v27, s[4:5] offset:16')
    a('global_load_dwordx4 v[104:107], v27, s[4:5] offset:2048'); a('global_load_dwordx4 v[108:111], v27, s[4:5] offset:2064')
    a('global_load_dwordx4 v[112:115], v26, s[74:75]'); a('global_load_dwordx4 v[116:119], v26, s[74:75] offset:16')
    st(3)
    a('s_lshl_b32 s66, s51, 8'); a('s_lshl_b32 s58, s56, 3'); a('s_add_u32 s66, s66, s58'); a(f's_add_u32 s66, s66, {WS_F1}')
    a('s_waitcnt vmcnt(10)')
    st.d(8)
    lds_inc(a, VC, V1, C_PKV)
    a('s_cmp_lg_u32 s49, 0'); a('s_cbranch_scc1 NPKV')
    a(f's_mov_b32 s71, {SPIN_MAX}')
    a('NONL:')
    a('v_readfirstlane_b32 s68, v62')
    a('s_memrealtime s[34:35]'); a('s_waitcnt lgkmcnt(0)')
    a('s_sub_u32 s34, s34, s68'); a('s_add_u32 s34, s34, 400')
    a('s_cmp_lt_u32 s34, 1600'); a('s_cselect_b32 s34, s68, 0')
    a('s_cmp_lg_u32 s34, 0'); a('s_cbranch_scc1 NONOK')
    a('s_sub_u32 s71, s71, 1'); a('s_cmp_eq_u32 s71, 0'); a('s_cbranch_scc1 NONOK')
    a(f's_cmp_lt_u32 s71, {SPIN_MAX - 64}'); a('s_cselect_b32 s34, s68, 0'); a('s_cmp_lg_u32 s34, 0'); a('s_cbranch_scc1 NONOK')
    a('s_sleep 2')
    a('buffer_load_dwordx2 v[62:63], v46, s[40:43], 0 offen sc1')
    a('s_waitcnt vmcnt(0)')
    a('s_branch NONL')
    a('NONOK:')
    lds_spin(a, VC, 23, 4, C_PKV)
    a('s_mov_b64 exec, 1')
    a('buffer_store_dwordx2 v[62:63], v46, s[44:47], s66 offen sc1')
    a('s_mov_b64 exec, -1')
    a('s_waitcnt vmcnt(7)')
    a('s_branch NPKV2')
    a('NPKV:')
    a('s_waitcnt vmcnt(6)')
    a('NPKV2:')
    if DIAG: a('s_getreg_b32 s98, hwreg(HW_REG_HW_ID)'); a('s_getreg_b32 s99, hwreg(HW_REG_XCC_ID)')
    lds_inc(a, VC, V1, C_PU)
    a('s_cmp_lg_u32 s49, 0'); a('s_cbranch_scc1 NPU')
    lds_spin(a, VC, 23, 4, C_PU)
    a('s_mov_b64 exec, 1')
    a('buffer_store_dwordx2 v[62:63], v46, s[44:47], s66 offen offset:128 sc1')
    a('s_mov_b64 exec, -1')
    a('NPU:')
    st(4)
    a('s_waitcnt vmcnt(2)')
    a('s_cmp_eq_u32 s49, 0'); a('s_cbranch_scc1 GOK'); a('s_waitcnt vmcnt(0)'); a('GOK:')
    for rr in range(2): a(f'v_mov_b32 v{120+rr}, 0'); a(f'v_mov_b32 v{122+rr}, 0')
    for i in range(4):
        for rr in range(2):
            a(f'v_dot2c_f32_bf16 v{120+rr}, v{96+8*rr+i}, v{112+i}'); a(f'v_dot2c_f32_bf16 v{122+rr}, v{100+8*rr+i}, v{116+i}')
    a('s_nop 3')
    for rr in range(2): a(f'v_add_f32 v{120+rr}, v{120+rr}, v{122+rr}')
    for sh in (1, 2, 4, 8):
        for rr in range(2): a(f'v_add_f32_dpp v{120+rr}, v{120+rr}, v{120+rr} row_shr:{sh} row_mask:0xf bank_mask:0xf bound_ctrl:0')
    for rr in range(2): a(f'v_add_f32_dpp v{120+rr}, v{120+rr}, v{120+rr} row_bcast:15 row_mask:0xa bank_mask:0xf')
    for rr in range(2): a(f'v_add_f32_dpp v{120+rr}, v{120+rr}, v{120+rr} row_bcast:31 row_mask:0xc bank_mask:0xf')
    a('v_readlane_b32 s57, v120, 63'); a('v_readlane_b32 s58, v121, 63')
    a('v_mov_b32 v120, s57'); a('v_mov_b32 v121, s58'); a('v_cndmask_b32 v120, v121, v120, s[64:65]')
    a('v_cvt_pk_bf16_f32 v120, v120, v120'); a('v_lshlrev_b32 v120, 16, v120')
    a(f's_mov_b32 s62, {LOG2E}'); a('v_mul_f32 v120, s62, v120'); a('v_sub_f32 v120, 0, v120')
    a('v_exp_f32 v120, v120'); a('v_add_f32 v120, 1.0, v120'); a('v_rcp_f32 v120, v120')
    a('v_cvt_pk_bf16_f32 v120, v120, v120'); a('v_lshlrev_b32 v120, 16, v120')
    a('v_sub_f32 v121, 1.0, v120'); a('v_cvt_pk_bf16_f32 v120, v120, v121')
    a('s_lshl_b32 s57, s59, 2'); a(f's_add_u32 s57, s57, {WS_G}'); a('v_lshlrev_b32 v121, 2, v2')
    a('s_mov_b64 exec, 3'); a('buffer_store_dword v120, v121, s[44:47], s57 offen sc1'); a('s_mov_b64 exec, -1')
    QR = 64
    a('s_lshl_b32 s58, s31, 12')
    def qload(t):
        for ph in range(4):
            a(f's_add_u32 s59, s58, {(WS_QU, WS_QKV)[t] + ph*1024}')
            a(f'buffer_load_dwordx4 v[{QR+16*t+4*ph}:{QR+16*t+4*ph+3}], v6, s[44:47], s59 offen sc1')
    a(f's_mul_i32 s59, s49, {REG}'); a(f's_add_u32 s59, s59, {QOFF + 128}')
    if STG:
        a('v_bfe_u32 v11, v2, 2, 2'); a('v_mul_u32_u24 v11, 1152, v11'); a('v_lshl_add_u32 v11, v5, 6, v11')
        a('v_and_b32 v12, 3, v2'); a('v_lshl_add_u32 v11, v12, 4, v11'); a('v_add_u32 v11, s59, v11')
    elif ROT:
        a('s_and_b32 s57, s31, 7'); a('s_lshl_b32 s57, s57, 7'); a('v_subrev_u32 v11, s57, v6'); a('v_and_b32 v11, 1023, v11'); a('v_add_u32 v11, s59, v11')
    else:
        a('v_add_u32 v11, s59, v6')
    a(f'v_add_u32 v10, {4*REG}, v11')
    a('s_cmp_lg_u32 s49, 0'); a('s_cbranch_scc1 POLLO')
    a('s_lshr_b32 s57, s30, 6'); a('s_lshl_b32 s57, s57, 8'); a(f's_add_u32 s57, s57, {WS_F1}')
    a('v_lshlrev_b32 v14, 3, v2'); a(f's_mov_b32 s71, {SPIN_MAX}'); a('s_mov_b32 s70, 0'); a('s_mov_b32 s33, 0')
    a('POLL:')
    a('s_mov_b64 exec, 0xffffffff')
    a('buffer_load_dwordx2 v[12:13], v14, s[44:47], s57 offen sc1')
    a('s_waitcnt vmcnt(0)')
    a('v_xor_b32 v12, v12, v62'); a('v_xor_b32 v13, v13, v63'); a('v_or_b32 v12, v12, v13'); a('v_cmp_ne_u32 vcc, 0, v12')
    a('s_mov_b64 exec, -1')
    a('s_mov_b32 s67, vcc_lo')
    a('s_cmp_lg_u32 s33, 0'); a('s_cbranch_scc1 G2D')
    a(f'ds_read_b32 v23, v{VC} offset:{C_PG}'); a('s_waitcnt lgkmcnt(0)'); a('v_readfirstlane_b32 s63, v23')
    a('s_cmp_lt_u32 s63, 3'); a('s_cbranch_scc1 G2D')
    a('s_lshl_b32 s63, s2, 3'); a(f's_add_u32 s63, s63, {WS_F2}')
    a('s_mov_b64 exec, 1')
    a('buffer_store_dwordx2 v[62:63], v46, s[44:47], s63 offen sc1')
    a('s_mov_b64 exec, -1')
    a('s_mov_b32 s33, 1')
    a('G2D:')
    a('s_sub_u32 s71, s71, 1'); a('s_cmp_eq_u32 s71, 0'); a('s_cselect_b32 s67, 0, s67')
    a('s_cmp_lg_u32 s70, 0'); a('s_cbranch_scc1 POLL2')
    a('s_and_b32 s63, s67, 0xffff'); a('s_cmp_lg_u32 s63, 0'); a('s_cbranch_scc1 POLLS')
    lds_inc(a, VC, V1, C_FKV)
    qload(1)
    a('s_mov_b32 s70, 1')
    a('POLL2:')
    a('s_lshr_b32 s63, s67, 16'); a('s_cmp_eq_u32 s63, 0'); a('s_cbranch_scc1 POLLD')
    a('s_cmp_eq_u32 s70, 2'); a('s_cbranch_scc1 POLLS')
    a('s_waitcnt vmcnt(0)')
    for ph in range(4): a(f'ds_write_b128 v10, v[{QR+16+4*ph}:{QR+16+4*ph+3}] offset:{ph*QST}')
    a('s_waitcnt lgkmcnt(0)')
    lds_inc(a, VC, V1, C_QB)
    a('s_mov_b32 s70, 2')
    a('POLLS:')
    a('s_sleep 1'); a('s_branch POLL')
    a('POLLD:')
    lds_inc(a, VC, V1, C_FU)
    qload(0)
    a('s_cmp_eq_u32 s70, 2'); a('s_cbranch_scc1 QB_DONE')
    a('s_branch QB_W')
    a('POLLO:')
    a('s_waitcnt vmcnt(0)')
    lds_inc(a, VC, V1, C_PG)
    lds_spin(a, VC, 23, 1, C_FKV)
    qload(1)
    a(f'ds_read_b32 v23, v{VC} offset:{C_FU}'); a('s_waitcnt lgkmcnt(0)'); a('v_readfirstlane_b32 s70, v23')
    a('s_cmp_ge_u32 s70, 1'); a('s_cbranch_scc1 POLLO2')
    a('s_waitcnt vmcnt(0)')
    for ph in range(4): a(f'ds_write_b128 v10, v[{QR+16+4*ph}:{QR+16+4*ph+3}] offset:{ph*QST}')
    a('s_waitcnt lgkmcnt(0)')
    lds_inc(a, VC, V1, C_QB)
    lds_spin(a, VC, 23, 1, C_FU)
    qload(0)
    a('s_branch QB_DONE')
    a('POLLO2:')
    qload(0)
    a('QB_W:')
    a('s_waitcnt vmcnt(4)')
    for ph in range(4): a(f'ds_write_b128 v10, v[{QR+16+4*ph}:{QR+16+4*ph+3}] offset:{ph*QST}')
    a('s_waitcnt lgkmcnt(0)')
    lds_inc(a, VC, V1, C_QB)
    a('QB_DONE:')
    st(5)
    a('s_waitcnt vmcnt(0)')
    for ph in range(4): a(f'ds_write_b128 v11, v[{QR+4*ph}:{QR+4*ph+3}] offset:{ph*QST}')
    a('s_waitcnt lgkmcnt(0)')
    lds_inc(a, VC, V1, C_QA)
    st(6)
    a('s_cmp_lg_u32 s49, 0'); a('s_cbranch_scc1 PAO')
    a('s_cmp_lg_u32 s33, 0'); a('s_cbranch_scc1 G2E')
    lds_spin(a, VC, 23, 3, C_PG)
    a('s_lshl_b32 s57, s2, 3'); a(f's_add_u32 s57, s57, {WS_F2}')
    a('s_mov_b64 exec, 1')
    a('buffer_store_dwordx2 v[62:63], v46, s[44:47], s57 offen sc1')
    a('s_mov_b64 exec, -1')
    a('G2E:')
    a(f's_mov_b32 s71, {SPIN_MAX}')
    a('PA:')
    a(f's_mov_b32 s57, {WS_F2}')
    a('buffer_load_dwordx4 v[64:67], v6, s[44:47], s57 offen sc1')
    a('buffer_load_dwordx4 v[68:71], v6, s[44:47], s57 offen offset:1024 sc1')
    a('s_waitcnt vmcnt(0)')
    for i in range(8): a(f'v_xor_b32 v{64+i}, v{64+i}, v{62+(i&1)}')
    for i in range(1, 8): a(f'v_or_b32 v64, v64, v{64+i}')
    a('v_cmp_ne_u32 vcc, 0, v64')
    a('s_cmp_eq_u64 vcc, 0'); a('s_cbranch_scc1 PAD')
    a('s_sub_u32 s71, s71, 1'); a('s_cmp_eq_u32 s71, 0'); a('s_cbranch_scc1 PAD')
    a('s_sleep 8'); a('s_branch PA')
    a('PAD:')
    lds_inc(a, VC, V1, C_F2)
    a('s_branch PAE')
    a('PAO:')
    lds_spin(a, VC, 23, 1, C_F2)
    a('PAE:')
    st(7)
    srd(a, 36, 76, 4 << 20)
    a('s_lshl_b32 s57, s49, 8'); a('v_lshl_add_u32 v49, v2, 2, s57')
    for c in range(8):
        a(f's_mov_b32 s59, {WS_G + 1024*c}'); a(f'buffer_load_dword v{96+c}, v49, s[44:47], s59 offen sc1')
    VF, VO = 50, 51
    a('v_lshrrev_b32 v10, 2, v4'); a(f'v_mul_u32_u24 v10, {TS}, v10'); a('v_and_b32 v11, 3, v2'); a('v_lshl_add_u32 v10, v11, 3, v10')
    a('v_mul_u32_u24 v11, 40, v5'); a('v_add_u32 v10, v10, v11')
    a('s_mul_i32 s59, s49, 160'); a(f's_add_u32 s59, s59, {TA}'); a(f'v_add_u32 v{VF}, s59, v10')
    a('s_lshl_b32 s59, s49, 17'); a('s_lshl_b32 s60, s30, 1'); a('s_add_u32 s59, s59, s60')
    a(f'v_lshlrev_b32 v10, 11, v2'); a(f'v_add_u32 v{VO}, s59, v10')
    a('s_waitcnt vmcnt(0)')
    F = 64
    for gi, g2 in enumerate(GROUPS):
        lds_spin(a, VC, 23, 4, C_A + 4*gi)
        lds_spin(a, VC, 23, 4, C_B + 4*gi)
        c0 = min(g2); npass = len(g2)
        for p in range(npass):
            off = 640 * (c0 + p)
            a(f'ds_read_b64_tr_b16 v[{F+4*p}:{F+4*p+1}], v{VF} offset:{off}')
            a(f'ds_read_b64_tr_b16 v[{F+4*p+2}:{F+4*p+3}], v{VF} offset:{off + 4*TS}')
        for p in range(npass):
            a(f's_waitcnt lgkmcnt({2*(npass-1-p)})')
            A0, A1, B0, B1 = F+4*p, F+4*p+1, F+4*p+2, F+4*p+3
            G = 96 + c0 + p
            a(f'v_lshlrev_b32 v34, 16, v{G}'); a(f'v_and_b32 v35, 0xffff0000, v{G}')
            a(f'v_lshlrev_b32 v26, 16, v{A0}'); a(f'v_and_b32 v27, 0xffff0000, v{A0}')
            a(f'v_lshlrev_b32 v28, 16, v{A1}'); a(f'v_and_b32 v29, 0xffff0000, v{A1}')
            a(f'v_lshlrev_b32 v30, 16, v{B0}'); a(f'v_and_b32 v31, 0xffff0000, v{B0}')
            a(f'v_lshlrev_b32 v32, 16, v{B1}'); a(f'v_and_b32 v33, 0xffff0000, v{B1}')
            for i in range(4): a(f'v_mul_f32 v{26+i}, v{26+i}, v34')
            for i in range(4): a(f'v_fmac_f32 v{26+i}, v{30+i}, v35')
            a(f'v_cvt_pk_bf16_f32 v{A0}, v26, v27'); a(f'v_cvt_pk_bf16_f32 v{A1}, v28, v29')
            a(f's_mov_b32 s59, {256*(c0+p) * 2048}')
            a(f'buffer_store_dwordx2 v[{A0}:{A1}], v{VO}, s[36:39], s59 offen')
        F = 104 if F == 64 else 64
        if gi == 0: st(8)
    st(9)
    a('s_branch KFIN')
    a('CONVP:')
    st.h = False
    a(f's_mul_i32 s67, s48, {REG}')
    a('v_lshrrev_b32 v27, 3, v2'); a('v_mul_u32_u24 v27, 1152, v27'); a('v_and_b32 v28, 7, v2')
    a('v_lshl_add_u32 v27, v28, 4, v27'); a(f'v_add_u32 v27, {QOFF}, v27')
    a('v_and_b32 v28, 1, v2'); a('v_lshlrev_b32 v28, 4, v28')
    a('v_cmp_gt_u32 vcc, 32, v2'); a('v_cndmask_b32 v27, v28, v27, vcc'); a('v_add_u32 v8, s67, v27')
    for r in range(16, 20): a(f'v_mov_b32 v{r}, 0')
    a('ds_write_b128 v8, v[16:19]')
    a('s_waitcnt lgkmcnt(0)')
    a('s_barrier')
    st(1)
    a('s_mov_b64 s[64:65], 1')
    a('v_lshlrev_b32 v6, 4, v2')
    a(f'v_mov_b32 v25, {CNT}'); a('v_mov_b32 v21, 1')
    a('v_cvt_f32_u32 v46, v4'); a('v_cvt_f32_u32 v47, v4')
    a('s_mov_b32 s52, 0x00010001'); a('s_mov_b32 s53, 0x00010001')
    a('s_mov_b32 s54, 0xff00ff00'); a('s_mov_b32 s55, 0xff00ff00')
    a(f's_mov_b32 s62, {LOG2E}'); a(f's_mov_b32 s63, {INV2PI}')
    a(f's_mul_i32 s57, s48, 1280'); a(f's_add_u32 s57, s57, {PAR}')
    a('v_lshl_add_u32 v32, v2, 4, s57')
    a('s_sub_u32 s58, s57, 0'); a('v_lshl_add_u32 v40, v5, 6, s58')
    a('s_add_u32 s57, s57, 1024'); a('v_lshl_add_u32 v33, v2, 2, s57'); a('v_lshl_add_u32 v41, v5, 4, s57')
    a(f's_waitcnt vmcnt({2 if TOUCH else 1})')
    st(6)
    for r in (10, 11, 12, 13, 14, 15): a(f'v_lshlrev_b32 v{r}, 16, v{r}')
    a('v_mul_f32 v14, s62, v14'); a('v_mul_f32 v10, s62, v10')
    a('v_exp_f32 v14, v14'); a('v_exp_f32 v10, v10')
    a('v_cvt_pk_bf16_f32 v14, v14, v14'); a('v_cvt_pk_bf16_f32 v10, v10, v10')
    a('v_lshlrev_b32 v14, 16, v14'); a('v_lshlrev_b32 v10, 16, v10')
    a('v_mul_f32 v28, v10, v14'); a('v_mul_f32 v29, v11, v14')
    a('v_mul_f32 v28, s62, v28'); a('v_sub_f32 v28, 0, v28'); a('v_mul_f32 v29, s63, v29')
    a('v_add_f32 v14, v14, v14'); a('v_mul_f32 v30, v12, v14'); a('v_mul_f32 v31, v13, v14')
    a('ds_write_b128 v32, v[28:31]')
    a('s_mov_b32 s58, 0x45000000')
    a('v_mul_f32 v34, s58, v28'); a('v_mul_f32 v35, s58, v29')
    a('v_exp_f32 v34, v34'); a('v_fract_f32 v35, v35'); a('v_cos_f32 v36, v35'); a('v_sin_f32 v37, v35')
    a('v_mul_f32 v36, v36, v34'); a('v_mul_f32 v37, v37, v34')
    a('v_mul_f32 v38, v31, v37'); a('v_mul_f32 v39, v31, v36')
    a('v_fma_f32 v38, v30, v36, -v38'); a('v_fma_f32 v39, -v30, v37, -v39')
    a('v_cvt_pk_bf16_f32 v38, v38, v39')
    a('ds_write_b32 v33, v38')
    a('s_waitcnt lgkmcnt(0)')
    st(7)
    KACC, KB = 48, 64
    srd(a, 36, 26, 4 << 20)
    def mid():
        a(f's_lshl_b32 s57, s50, 2'); a('s_add_u32 s57, s57, s69'); a(f's_cmp_lg_u32 s57, {4 + SKIT}'); a('s_cbranch_scc1 NOSK')
        a('s_lshl_b32 s62, s31, 12')
        for i in range(4):
            a(f's_add_u32 m0, s67, {32 + i*1024}'); a(f's_add_u32 s63, s62, {i*1024}')
            a('buffer_load_dwordx4 v6, s[36:39], s63 offen lds')
        a('NOSK:')
    kgen_loop(a, 40, KACC, KB, mid)
    st(2)
    a(f's_lshl_b32 s57, s49, 12'); a(f's_add_u32 s57, s57, {PART}'); a('v_lshl_add_u32 v40, v2, 4, s57')
    a('s_lshl_b32 s57, s49, 2'); a(f'v_add_u32 v41, s57, v{VC}')
    a('s_nop 7')
    a('s_cmp_eq_u32 s50, 0'); a('s_cbranch_scc1 AEXP')
    for b in range(4): a(f'ds_write_b128 v40, v[{KACC+4*b}:{KACC+4*b+3}] offset:{b*1024}')
    a('s_waitcnt lgkmcnt(0)')
    lds_inc(a, 41, V1, C_PART)
    a('s_waitcnt vmcnt(0)')
    a('s_add_u32 s57, s67, 32'); a('v_mov_b32 v10, s57')
    a('ds_read_u16 v11, v10'); a('s_waitcnt lgkmcnt(0)')
    a('v_lshlrev_b32 v11, 16, v11'); a('v_lshlrev_b32 v9, 16, v9'); a('v_add_f32 v11, v11, v9')
    a('v_cvt_pk_bf16_f32 v11, v11, v11'); a('ds_write_b16 v10, v11')
    a('s_branch CSET')
    a('AEXP:')
    lds_spin(a, 41, 42, 1, C_PART)
    for b in range(4): a(f'ds_read_b128 v[{64+4*b}:{64+4*b+3}], v40 offset:{b*1024}')
    a('s_waitcnt lgkmcnt(0)')
    for i in range(16): a(f'v_add_f32 v{KACC+i}, v{KACC+i}, v{64+i}')
    a('v_mov_b32 v84, 0'); a('v_cndmask_b32 v84, v84, v15, s[64:65]'); a(f'v_add_f32 v{KACC}, v{KACC}, v84')
    a('s_add_u32 s57, s67, 32'); a('v_mov_b32 v85, s57')
    gen_expand(a, KACC, 85, 88)
    a('CSET:')
    st(3)
    VA, VB, VIDX, VZERO, VT_, VX = 16, 17, 18, 19, 20, 22
    a('v_lshrrev_b32 v10, 2, v4'); a('v_and_b32 v11, 3, v2'); a('v_sub_u32 v11, v11, v10'); a('v_lshlrev_b32 v11, 3, v11')
    a('v_lshlrev_b32 v10, 6, v5'); a('v_sub_u32 v11, v11, v10'); a('s_add_u32 s59, s67, 224'); a(f'v_add_u32 v{VA}, s59, v11')
    a('v_lshlrev_b32 v10, 3, v4'); a('v_lshl_add_u32 v10, v5, 4, v10'); a(f's_add_u32 s59, s67, {QOFF + 8}'); a(f'v_add_u32 v{VB}, s59, v10')
    a('v_add_u32 v10, -1, v4'); a('v_and_b32 v10, 15, v10'); a('v_add_u32 v10, 48, v10')
    a('v_add_u32 v11, -16, v2'); a('v_cmp_gt_u32 vcc, 16, v2'); a('v_cndmask_b32 v10, v11, v10, vcc'); a(f'v_lshlrev_b32 v{VIDX}, 2, v10')
    a(f'v_mov_b32 v{VZERO}, 0')
    a(f's_mul_i32 s59, s49, {TS}'); a(f's_mul_i32 s60, s50, {4*TS}'); a('s_add_u32 s59, s59, s60'); a(f's_add_u32 s59, s59, {TA}')
    a('v_mul_u32_u24 v10, 40, v4'); a('v_lshl_add_u32 v10, v5, 3, v10'); a(f'v_add_u32 v{VT_}, s59, v10')
    a(f's_mul_i32 s59, s49, {REG}'); a(f's_add_u32 s59, s59, {QOFF + 128}')
    a('v_lshlrev_b32 v10, 3, v4'); a('v_lshl_add_u32 v10, v5, 1, v10'); a(f'v_add_u32 v{VX}, s59, v10')
    AF, CACC, TMP, XR = 32, 96, 140, 150
    BR = 96 + 4 * max(5, max(len(x) for x in GROUPS)); NB = min(NBR, (140 - BR) // 4)
    a('s_cmp_eq_u32 s50, 0'); a('s_cbranch_scc0 CONVB')
    q = DSQ(a)
    def epiA(gi, grp, acc):
        q.waitall()
        for j, c in enumerate(grp):
            r = XR + 2*(j % 4)
            a(f'v_cvt_pk_bf16_f32 v{r}, v{acc(c)}, v{acc(c)+1}'); a(f'v_cvt_pk_bf16_f32 v{r+1}, v{acc(c)+2}, v{acc(c)+3}')
            a(f'ds_write_b64 v{VT_}, v[{r}:{r+1}] offset:{640*c}')
        a('s_waitcnt lgkmcnt(0)')
        lds_inc(a, VC, V1, C_A + 4*gi); q.n += 1
    def preA():
        lds_spin(a, VC, 23, 4, C_QA); st(4)
    conv(a, q, GROUPS, AF, CACC, BR, NB, TMP, VA, VB, VIDX, VZERO, epiA, preA)
    st(5)
    a('s_branch KFIN')
    a('CONVB:')
    if BPRIO: a(f's_setprio {BPRIO}')
    q2 = DSQ(a)
    def epiB(gi, grp, acc):
        q2.waitall()
        if gi == 0: lds_spin(a, VC, 23, 4, C_QA)
        for j0 in range(0, len(grp), 4):
            sub = grp[j0:j0+4]
            for j, c in enumerate(sub):
                for ph in range(4): q2.issue(f'ds_read_u16_d16_hi v{XR+4*j+ph}, v{VX} offset:{ph*1152+128*c}')
                if j % 2 == 1: q2.wait(q2.n - 4)
            q2.waitall()
            for j, c in enumerate(sub):
                for i in range(4): a(f'v_and_b32 v{XR+4*j+i}, 0xffff0000, v{XR+4*j+i}')
                for i in range(4): a(f'v_mul_f32 v{XR+4*j+i}, v{XR+4*j+i}, v{acc(c)+i}')
                a(f'v_cvt_pk_bf16_f32 v{XR+4*j}, v{XR+4*j}, v{XR+4*j+1}'); a(f'v_cvt_pk_bf16_f32 v{XR+4*j+1}, v{XR+4*j+2}, v{XR+4*j+3}')
                a(f'ds_write_b64 v{VT_}, v[{XR+4*j}:{XR+4*j+1}] offset:{640*c}')
            a('s_waitcnt lgkmcnt(0)')
        lds_inc(a, VC, V1, C_B + 4*gi); q2.n += 1
    def preB():
        lds_spin(a, VC, 23, 4, C_QB); st(4)
    conv(a, q2, GROUPS, AF, CACC, BR, NB, TMP, VA, VB, VIDX, VZERO, epiB, preB, PDROP)
    st(5)
    a('KFIN:')
    st(10); st.dump(11)
    a('KEND:')
    a('s_endpgm')
    return a, 168, LDS

SKIT = int(os.environ.get('SKIT', '2'))
TOUCH = int(os.environ.get('TOUCH', '0'))
MAP = int(os.environ.get('MAP', '0'))
STG = int(os.environ.get('STG', '1'))
XW = int(os.environ.get('XW', '0'))
PDROP = eval(os.environ.get('PDROP', '(1,1,0)'))
QST = 256 if STG else 1152
STGB = PART + 16384
ROT = int(os.environ.get('ROT', '0'))
BPRIO = int(os.environ.get('BPRIO', '1'))
def build(path):
    hdr = open('cdna_kernels/' + NAME + '.s.ref').read().split('\n')
    head = [l for l in hdr[:18] if l.startswith(';') and '@launch' not in l and 'Override' not in l and 'grid=ceil' not in l]
    k, nv, lds = gen()
    out = head[:]
    out.append(f'; @launch grid=(256,1,1) block=(768,1,1) lds={lds}')
    out.append('.amdgcn_target "amdgcn-amd-amdhsa--gfx950"'); out.append('.text')
    out.append(f'.globl {KN}'); out.append('.p2align 8'); out.append(f'.type {KN},@function')
    lines, nn = k.finalize(); print('instrs', len(lines), 'nops', nn)
    out += lines
    out.append('.section .rodata,"a"'); out.append(kd(KN, nv))
    open(path, 'w').write('\n'.join(out) + '\n')

if __name__ == '__main__':
    if len(sys.argv) > 2:
        gen1.STAMPS = True
        if sys.argv[2] == 'c': gen1.STAMPOP = 's_memtime'
    build(sys.argv[1])
```

```python
import sys
import gen1
from asmlib import Asm
from gen1 import srd, LOG2E, INV2PI, NAME, gen_expand, WS_QU, WS_QKV, WS_G
from gen2 import DSQ, kd
from gen4 import kgen_step, lds_spin, SPIN_MAX

WS_F1 = (12 << 20) + 8192
WS_F2 = WS_F1 + 4096
WS_SIZE = WS_F2 + 2048
WS_DBG = 13 << 20
REG = 8736; QOFF = 4128
CNT = 8 * REG
XT = CNT + 128
VT = XT + 16384
KT = VT + 16384
PAR = KT + 17408
PART = PAR + 10240
LDS = PART + 16384 + 16384
TS = 5184
TA = XT; TB = XT + 4 * TS
KN = 'gated_mix__ssm_conv_s4d__ssm_conv_h3__prompt_kernel'
import os
GROUPS = eval(os.environ.get('GRP', '((0,1,2,3,4),(5,6,7))'))
NBR = int(os.environ.get('NB', '6'))
SPB = 6 if len(GROUPS) <= 2 else 4
C_TKV, C_TX, C_PKV, C_PU, C_FKV, C_FU, C_QB, C_QA, C_PG, C_F2, C_A, C_B, C_PART = 0, 4, 8, 12, 16, 20, 24, 28, 32, 36, 40, 56, 72

DIAG = os.environ.get('DIAG')
class St:
    def __init__(self, a): self.a = a; self.h = False
    def d(self, n):
        if DIAG and gen1.STAMPS: self.a(f'{gen1.STAMPOP} s[{80+2*n}:{81+2*n}]')
    def __call__(self, n):
        if DIAG and self.h and 5 <= n <= 9: return
        if gen1.STAMPS: self.a(f'{gen1.STAMPOP} s[{80+2*n}:{81+2*n}]')
    def dump(self, n):
        if not gen1.STAMPS: return
        a = self.a
        a('s_waitcnt vmcnt(0) lgkmcnt(0)')
        a('s_mul_i32 s66, s2, 12'); a('s_add_u32 s66, s66, s48'); a('s_lshl_b32 s66, s66, 7'); a(f's_add_u32 s66, s66, {WS_DBG}')
        a('v_mov_b32 v1, s66'); a('s_mov_b64 exec, 1')
        for i in range(n):
            a(f'v_mov_b32 v2, s{80+2*i}'); a(f'v_mov_b32 v3, s{81+2*i}')
            a(f'global_store_dwordx2 v1, v[2:3], s[28:29] offset:{8*i}')
        a('s_mov_b64 exec, -1')

def lds_inc(a, VC, V1, off):
    a('s_mov_b64 exec, 1'); a(f'ds_add_u32 v{VC}, v{V1} offset:{off}'); a('s_mov_b64 exec, -1')

def conv(a, q, groups, AF, ACC, BR, NB, TMP, VA, VB, VIDX, VZERO, epilogue, pre, pdrop=None):
    items = []
    for gi, grp in enumerate(groups):
        for ph in (3, 2, 1, 0):
            for mu in range(-1, 2 * max(grp) + 1):
                items.append((gi, ph, mu, [c for c in grp if mu <= 2 * c]))
    c0of = {}
    for grp in groups:
        for c in grp: c0of[c] = min(grp)
    def acc(c): return ACC + 4 * (c - c0of[c])
    btag = {}; atag = {}
    def loadB(i):
        gi, ph, mu, _ = items[i]
        if os.environ.get('NOB') and i >= NB:
            btag[i] = 0; return
        s = BR + 4 * (i % NB); off = ph * 1152 + 64 * (mu + 1)
        q.issue(f'ds_read_b64 v[{s}:{s+1}], v{VB} offset:{off}')
        btag[i] = q.issue(f'ds_read_b64 v[{s+2}:{s+3}], v{VB} offset:{off+8}')
    def loadA(m):
        r = AF + 4 * m
        q.issue(f'ds_read_b64_tr_b16 v[{r}:{r+1}], v{VA} offset:{256*m+32}')
        atag[m] = q.issue(f'ds_read_b64_tr_b16 v[{r+2}:{r+3}], v{VA} offset:{256*m}')
    aorder = []
    for gi, ph, mu, cs in items:
        for c in cs:
            m = 2 * c - mu
            if m not in aorder: aorder.append(m)
    first_use = {}
    for i, (gi, ph, mu, cs) in enumerate(items):
        for c in cs: first_use.setdefault(2 * c - mu, i)
    apend = list(aorder)
    def tmpreg(c, ph):
        for gi, grp in enumerate(groups):
            if c == max(grp) and gi < len(groups) - 1: return TMP + SPB + 3 * gi + (ph - 1)
        return TMP + (c - c0of[c])
    pend = []; nm = [0]
    def shift_bperm(e):
        c, ph = e['c'], e['ph']
        e['tag'] = q.issue(f'ds_bpermute_b32 v{tmpreg(c,ph)}, v{VIDX}, v{acc(c)+3}')
        e['stage'] = 1; e['since'] = nm[0]
    def shift_fin(e):
        c, ph = e['c'], e['ph']
        q.wait(e['tag'])
        r = acc(c)
        prev = f'v{tmpreg(c-1,ph)}' if c > 0 else f'v{VZERO}'
        a(f'v_mov_b32 v{r+3}, v{r+2}'); a(f'v_mov_b32 v{r+2}, v{r+1}'); a(f'v_mov_b32 v{r+1}, v{r}')
        a(f'v_cndmask_b32 v{r}, v{tmpreg(c,ph)}, {prev}, s[64:65]')
        e['stage'] = 2
    def progress(force_c=None):
        for e in list(pend):
            if e['stage'] == 0 and (nm[0] - e['since'] >= 6 or force_c is not None): shift_bperm(e)
            elif e['stage'] == 1 and (nm[0] - e['since'] >= 6 or force_c is not None):
                shift_fin(e); pend.remove(e)
            if force_c is not None and e['c'] == force_c and e in pend:
                if e['stage'] == 0: shift_bperm(e)
                shift_fin(e); pend.remove(e)
            if e in pend and force_c is None: break
            if force_c is not None and e['c'] == force_c: break
    a('s_waitcnt lgkmcnt(0)')
    while apend:
        loadA(apend.pop(0))
        if q.n - q.done > 12: q.wait(q.n - 8)
    q.waitall()
    pre()
    nbl = 0
    for i in range(2): loadB(i)
    nbl = 2
    for i, (gi, ph, mu, cs) in enumerate(items):
        cs = [c for c in cs if not any(e['c'] == c for e in pend)] + [c for c in cs if any(e['c'] == c for e in pend)]
        if pdrop is not None and (gi, ph, mu) == (pdrop[0], pdrop[1], -1): a(f's_setprio {pdrop[2]}')
        if nbl <= i: loadB(nbl); nbl += 1
        for c in cs:
            m = 2 * c - mu
            while m not in atag:
                if q.n - q.done > 12: q.wait(q.n - 8)
                loadA(apend.pop(0))
            k = 0
            while apend and first_use[apend[0]] <= i + 12 and (q.n - q.done) <= 11 and k < 2:
                loadA(apend.pop(0)); k += 1
            if any(e['c'] == c for e in pend): progress(force_c=c)
            q.wait(btag[i]); q.wait(atag[m])
            s = BR + 4 * (i % NB)
            cin = '0' if (ph == 3 and mu == -1) else f'v[{acc(c)}:{acc(c)+3}]'
            a(f'v_mfma_f32_16x16x32_bf16 v[{acc(c)}:{acc(c)+3}], v[{AF+4*m}:{AF+4*m+3}], v[{s}:{s+3}], {cin}')
            nm[0] += 1
            if mu == 2 * c and ph > 0 and not os.environ.get('NOSHIFT'): pend.append(dict(c=c, ph=ph, stage=0, since=nm[0], tag=None))
            progress()
            if nbl < min(i + NB, len(items)) and (q.n - q.done) <= 11:
                loadB(nbl); nbl += 1
        if (i + 1 == len(items)) or items[i + 1][0] != gi:
            assert not pend
            epilogue(gi, groups[gi], acc)


def kgen_loop(a, PARB, acc, base, mid):
    P = base; Z = base + 20; X = base + 28; T = base + 36; Y = base + 44; XB = base + 60
    E = range(4)
    def z(e): return f'v[{Z+2*e}:{Z+2*e+1}]'
    def x(e): return f'v[{X+2*e}:{X+2*e+1}]'
    def t(e): return f'v[{T+2*e}:{T+2*e+1}]'
    def rd():
        for e in E: a(f'ds_read_b128 v[{P+4*e}:{P+4*e+3}], v{PARB} offset:{e*16}')
        a(f'ds_read_b128 v[{P+16}:{P+19}], v{PARB+1}')
    for i in range(16): a(f'v_mov_b32 v{acc+i}, 0')
    rd()
    a('s_mov_b32 s69, 0')
    a('KGL:')
    a(f'v_add_u32 v{PARB}, 256, v{PARB}'); a(f'v_add_u32 v{PARB+1}, 64, v{PARB+1}')
    a('s_waitcnt lgkmcnt(0)')
    for e in E: a(f'v_pk_mul_f32 {t(e)}, v[{P+4*e}:{P+4*e+1}], v[46:47]')
    for e in E: a(f'v_exp_f32 v{T+2*e}, v{T+2*e}')
    for e in E: a(f'v_fract_f32 v{T+2*e+1}, v{T+2*e+1}')
    for e in E: a(f'v_cos_f32 v{Z+2*e}, v{T+2*e+1}')
    for e in E: a(f'v_sin_f32 v{Z+2*e+1}, v{T+2*e+1}')
    for e in E: a(f'v_pk_mul_f32 {z(e)}, {z(e)}, {t(e)} op_sel:[0,0] op_sel_hi:[1,0]')
    def sqall():
        for e in E: a(f'v_pk_mul_f32 {t(e)}, {z(e)}, {z(e)} op_sel:[0,0] op_sel_hi:[0,1]')
        for e in E: a(f'v_pk_fma_f32 {z(e)}, {z(e)}, {z(e)}, {t(e)} op_sel:[1,1,0] op_sel_hi:[0,1,1] neg_lo:[1,0,0]')
    for b in range(4):
        for e in E: a(f'v_cvt_pk_bf16_f32 v{Y+4*b+e}, v{Z+2*e}, v{Z+2*e+1}')
        sqall()
    for e in E: a(f'v_pk_mul_f32 {t(e)}, v[{P+4*e+2}:{P+4*e+3}], {z(e)} op_sel:[1,1] op_sel_hi:[1,0]')
    for e in E: a(f'v_pk_fma_f32 {x(e)}, v[{P+4*e+2}:{P+4*e+3}], {z(e)}, {t(e)} op_sel:[0,0,0] op_sel_hi:[0,1,1] neg_lo:[0,0,1] neg_hi:[1,0,1]')
    for e in E: a(f'v_cvt_pk_bf16_f32 v{XB+e}, v{X+2*e}, v{X+2*e+1}')
    for b in range(1, 4):
        for e in E: a(f'v_pk_mul_f32 {t(e)}, {x(e)}, {z(e)} op_sel:[0,0] op_sel_hi:[1,0]')
        for e in E: a(f'v_pk_fma_f32 {x(e)}, {x(e)}, {z(e)}, {t(e)} op_sel:[1,1,0] op_sel_hi:[0,1,1] neg_hi:[1,0,0]')
        for e in E: a(f'v_cvt_pk_bf16_f32 v{XB+4*b+e}, v{X+2*e}, v{X+2*e+1}')
        if b < 3: sqall()
    for e in E: a(f'v_cndmask_b32 v{XB+12+e}, v{XB+12+e}, v{P+16+e}, s[52:53]')
    rd()
    for b in range(4):
        a(f'v_mfma_f32_16x16x32_bf16 v[{acc+4*b}:{acc+4*b+3}], v[{Y+4*b}:{Y+4*b+3}], v[{XB+4*b}:{XB+4*b+3}], v[{acc+4*b}:{acc+4*b+3}]')
    mid()
    a('s_add_u32 s69, s69, 1'); a('s_cmp_lt_u32 s69, 4'); a('s_cbranch_scc1 KGL')
    a('s_waitcnt lgkmcnt(0)')

def gen():
    a = Asm(); st = St(a)
    VC, V1 = 25, 21
    a(f'{KN}:')
    a('s_cmp_ge_u32 s2, 256'); a('s_cbranch_scc1 KEND')
    st(0)
    a('s_load_dwordx4 s[20:23], s[0:1], 64')
    a('s_load_dwordx4 s[4:7], s[0:1], 0')
    a('s_load_dwordx4 s[24:27], s[0:1], 80')
    a('s_load_dwordx4 s[76:79], s[0:1], 112')
    a('s_load_dwordx4 s[8:11], s[0:1], 16')
    a('s_load_dwordx4 s[12:15], s[0:1], 32')
    a('s_load_dwordx2 s[16:17], s[0:1], 48')
    a('s_load_dwordx4 s[72:75], s[0:1], 96')
    a('s_load_dwordx2 s[28:29], s[0:1], 128')
    a('v_lshrrev_b32 v1, 6, v0'); a('v_and_b32 v2, 63, v0'); a('v_readfirstlane_b32 s48, v1')
    a('v_and_b32 v4, 15, v2'); a('v_lshrrev_b32 v5, 4, v2')
    a('s_and_b32 s49, s48, 3'); a('s_lshr_b32 s50, s48, 2')
    a('s_cmp_eq_u32 s50, 2'); a('s_cbranch_scc1 HELP')
    a('s_and_b32 s30, s2, 7'); a('s_lshl_b32 s30, s30, 5'); a('s_lshr_b32 s31, s2, 3'); a('s_add_u32 s30, s30, s31')
    a('s_lshl_b32 s30, s30, 2'); a('s_add_u32 s31, s30, s49')
    a('s_lshl_b32 s57, s31, 8'); a('s_lshl_b32 s58, s50, 7'); a('s_add_u32 s57, s57, s58')
    a('v_lshl_add_u32 v26, v2, 1, s57'); a('s_lshl_b32 s57, s31, 1'); a('v_mov_b32 v7, s57')
    a('s_waitcnt lgkmcnt(0)')
    a('global_load_ushort v10, v26, s[6:7]'); a('global_load_ushort v11, v26, s[8:9]')
    a('global_load_ushort v14, v7, s[14:15]')
    a('global_load_ushort v12, v26, s[10:11]'); a('global_load_ushort v13, v26, s[12:13]')
    a('global_load_ushort v15, v7, s[16:17]')
    a('global_load_ushort v9, v7, s[72:73]')
    if TOUCH:
        a('s_lshl_b32 s57, s48, 2'); a('s_add_u32 s57, s57, 0')
        a('s_and_b32 s58, s2, 15'); a('s_lshl_b32 s58, s58, 18')
        a('s_cmp_eq_u32 s48, 0'); a('s_cbranch_scc1 TC0')
        a('s_cmp_eq_u32 s48, 1'); a('s_cbranch_scc1 TC1')
        a('s_cmp_eq_u32 s48, 2'); a('s_cbranch_scc1 TC2')
        a('s_cmp_eq_u32 s48, 3'); a('s_cbranch_scc1 TC3')
        a('s_branch TCD')
        a('TC0:')
        a('v_and_b32 v27, 1, v2'); a('v_lshlrev_b32 v27, 22, v27')
        a('s_lshl_b32 s59, s30, 12'); a('v_mov_b32 v28, s58'); a('v_mov_b32 v29, s59')
        a('v_cmp_gt_u32 vcc, 2, v2'); a('v_cndmask_b32 v28, v29, v28, vcc'); a('v_add_u32 v27, v27, v28')
        a(f'v_mov_b32 v28, {WS_F1}'); a('v_cmp_gt_u32 vcc, 4, v2'); a('v_cndmask_b32 v27, v28, v27, vcc')
        a('s_mov_b64 exec, 31'); a('global_load_dword v164, v27, s[28:29]'); a('s_mov_b64 exec, -1')
        a('s_branch TCE')
        a('TC1:')
        a('v_lshlrev_b32 v27, 18, v4'); a('s_mov_b64 exec, 0xffff'); a('global_load_dword v164, v27, s[76:77]'); a('s_mov_b64 exec, -1')
        a('s_branch TCE')
        a('TC2:')
        a('s_lshl_b32 s59, s30, 12'); a('v_mov_b32 v27, s59'); a('s_mov_b64 exec, 1'); a('global_load_dword v164, v27, s[26:27]'); a('s_mov_b64 exec, -1')
        a('s_branch TCE')
        a('TC3:')
        a('s_lshr_b32 s59, s2, 4'); a('s_lshl_b32 s59, s59, 18'); a('v_mov_b32 v27, s59'); a('s_mov_b64 exec, 1'); a('global_load_dword v164, v27, s[4:5]'); a('s_mov_b64 exec, -1')
        a('s_branch TCE')
        a('TCD:')
        a('v_lshlrev_b32 v27, 2, v2'); a('global_load_dword v164, v27, s[74:75]')
        a('TCE:')
    a('s_branch CONVP')
    a('HELP:')
    st.h = True
    if MAP:
        a('s_lshr_b32 s51, s2, 3'); a('s_and_b32 s51, s51, 15')
        a('s_and_b32 s56, s2, 7'); a('s_lshr_b32 s57, s2, 7'); a('s_lshl_b32 s57, s57, 3'); a('s_add_u32 s56, s56, s57')
    else:
        a('s_and_b32 s51, s2, 15'); a('s_lshr_b32 s56, s2, 4')
    a('v_lshrrev_b32 v34, 3, v2'); a('v_and_b32 v35, 7, v2')
    a('v_and_b32 v36, 1, v5'); a('v_lshlrev_b32 v36, 1, v36')
    a('s_and_b32 s57, s49, 1'); a('s_lshl_b32 s57, s57, 2')
    a('v_or_b32 v37, s57, v36'); a('v_xor_b32 v37, v37, v35'); a('v_lshlrev_b32 v37, 4, v37'); a('v_lshl_add_u32 v37, v34, 11, v37')
    a('s_lshl_b32 s57, s56, 18'); a('s_lshl_b32 s58, s49, 16'); a('s_add_u32 s57, s57, s58')
    a('s_lshl_b32 s58, s51, 7'); a('s_add_u32 s60, s57, s58')
    a('s_lshl_b32 s61, s49, 12')
    a(f's_sub_u32 s62, s60, {4*2048}')
    for i in range(4):
        a(f's_add_u32 s57, s62, {i*8*2048}'); a(f'v_add_u32 v{26+i}, s57, v37')
    a('s_lshl_b32 s57, s51, 9'); a('s_lshl_b32 s58, s49, 7'); a('s_add_u32 s57, s57, s58'); a('v_lshl_add_u32 v43, v4, 3, s57')
    a('s_waitcnt lgkmcnt(0)')
    srd(a, 36, 20, 4 << 20)
    srd(a, 40, 78, 256)
    a('v_mov_b32 v46, 0')
    a('s_or_b32 s57, s2, s49'); a('s_cmp_lg_u32 s57, 0'); a('s_cbranch_scc1 NONW')
    a('s_memrealtime s[68:69]'); a('s_waitcnt lgkmcnt(0)'); a('s_or_b32 s68, s68, 1')
    a('v_mov_b32 v54, s68'); a('v_mov_b32 v55, s69'); a('s_mov_b64 exec, 1')
    a('buffer_store_dwordx2 v[54:55], v46, s[40:43], 0 offen sc1'); a('s_mov_b64 exec, -1')
    a('NONW:')
    srd(a, 32, 22, 4 << 20)
    a('global_load_dwordx2 v[32:33], v43, s[24:25]')
    for i in range(4):
        a(f's_add_u32 m0, s61, {KT + i*1024}'); a('s_nop 0')
        a(f'buffer_load_dwordx4 v{26+i}, s[36:39], 0 offen lds')
    a('s_cmp_lg_u32 s49, 3'); a('s_cbranch_scc1 NOX')
    a('v_xor_b32 v44, v36, v35'); a('v_lshlrev_b32 v44, 4, v44'); a('v_lshl_add_u32 v44, v34, 11, v44')
    a('s_lshl_b32 s57, s56, 18'); a(f's_add_u32 s57, s57, {124*2048}'); a('s_lshl_b32 s58, s51, 7'); a('s_add_u32 s57, s57, s58')
    a(f's_mov_b32 m0, {KT + 128*128}'); a('s_nop 0')
    a('buffer_load_dwordx4 v44, s[36:39], s57 offen lds')
    a('NOX:')
    for i in range(4):
        a(f's_add_u32 s57, s60, {i*8*2048}'); a(f's_add_u32 m0, s61, {VT + i*1024}')
        a('buffer_load_dwordx4 v37, s[32:35], s57 offen lds')
    st(1)
    a(f'v_mov_b32 v25, {CNT}'); a('v_mov_b32 v21, 1')
    for r in range(12, 16): a(f'v_mov_b32 v{r}, 0')
    a('v_and_b32 v10, 7, v2'); a('v_lshlrev_b32 v10, 4, v10'); a(f'v_add_u32 v10, {CNT}, v10')
    a('ds_write_b128 v10, v[12:15]')
    a('s_waitcnt lgkmcnt(0)')
    a('s_barrier')
    srd(a, 44, 28, WS_SIZE)
    a('s_mov_b64 s[64:65], 1')
    a('v_lshlrev_b32 v6, 4, v2')
    a('s_and_b32 s30, s2, 7'); a('s_lshl_b32 s30, s30, 5'); a('s_lshr_b32 s31, s2, 3'); a('s_add_u32 s30, s30, s31')
    a('s_lshl_b32 s30, s30, 2'); a('s_add_u32 s31, s30, s49')
    a('v_lshrrev_b32 v46, 2, v4'); a('v_and_b32 v47, 3, v2'); a('v_lshrrev_b32 v48, 1, v47')
    a('s_lshl_b32 s57, s49, 1'); a('v_add_u32 v48, s57, v48')
    a('v_lshlrev_b32 v49, 1, v46'); a('v_xor_b32 v49, v48, v49'); a('v_lshlrev_b32 v49, 4, v49')
    a('v_and_b32 v50, 1, v47'); a('v_lshlrev_b32 v50, 3, v50')
    a('v_add_u32 v49, v49, v50'); a('v_lshl_add_u32 v49, v46, 9, v49'); a('v_lshl_add_u32 v49, v5, 12, v49'); a(f'v_add_u32 v49, {XT}, v49')
    a('v_lshrrev_b32 v51, 1, v46'); a('v_lshlrev_b32 v51, 1, v51'); a('v_and_b32 v52, 1, v5'); a('v_lshl_or_b32 v51, v52, 2, v51')
    a('v_xor_b32 v52, v48, v51'); a('v_xor_b32 v53, 4, v52')
    a('v_lshl_add_u32 v50, v46, 7, v50'); a('v_lshl_add_u32 v50, v5, 12, v50'); a(f'v_add_u32 v50, {VT}, v50')
    a('v_lshl_add_u32 v52, v52, 4, v50'); a('v_lshl_add_u32 v53, v53, 4, v50')
    a('s_lshl_b32 s57, s51, 18'); a('s_lshl_b32 s58, s49, 16'); a('s_add_u32 s57, s57, s58'); a('s_lshl_b32 s58, s56, 6')
    if STG:
        a('s_lshl_b32 s58, s56, 8'); a('s_add_u32 s57, s57, s58')
        a('v_lshlrev_b32 v54, 12, v5'); a('v_lshl_add_u32 v54, v4, 4, v54'); a('v_add_u32 v54, s57, v54')
        a('s_lshl_b32 s57, s49, 12'); a(f's_add_u32 s57, s57, {STGB}')
        for ph in range(4):
            a(f'v_or_b32 v{60}, {4*ph}, v5'); a('v_xor_b32 v60, v60, v4'); a('v_lshlrev_b32 v60, 4, v60'); a('v_lshl_add_u32 v60, v4, 8, v60')
            a(f'v_add_u32 v{(16,17,18,19)[ph]}, s57, v60')
        for i in range(4):
            a(f'v_add_u32 v60, {4*i}, v5'); a('v_xor_b32 v61, v60, v4'); a('v_lshlrev_b32 v61, 4, v61'); a('v_lshl_add_u32 v61, v60, 8, v61')
            a(f'v_add_u32 v{(7,8,9,22)[i]}, s57, v61')
    elif ROT:
        a('v_lshlrev_b32 v54, 4, v5'); a('v_add_u32 v54, s58, v54'); a('v_lshl_add_u32 v54, v4, 7, v54'); a('v_and_b32 v54, 1023, v54')
        a('v_lshl_add_u32 v54, v4, 12, v54'); a('v_add_u32 v54, s57, v54')
    else:
        a('s_add_u32 s57, s57, s58')
        a('v_lshlrev_b32 v54, 12, v4'); a('v_lshl_add_u32 v54, v5, 4, v54'); a('v_add_u32 v54, s57, v54')
    a('v_mov_b32 v46, 0')
    srd(a, 32, 4, 4 << 20)
    a('v_lshrrev_b32 v38, 5, v2'); a('v_lshlrev_b32 v38, 1, v38')
    for hb in range(2):
        a(f'v_or_b32 v39, {4*hb}, v38'); a('v_xor_b32 v39, v39, v35'); a('v_lshlrev_b32 v39, 4, v39'); a(f'v_lshl_add_u32 v{40+hb}, v34, 11, v39')
    a('s_setprio 2')
    a(f's_waitcnt vmcnt({XW})')
    for i in range(4):
        a(f's_add_u32 s57, s60, {i*8*2048}'); a(f's_add_u32 m0, s61, {XT + i*1024}')
        a(f'buffer_load_dwordx4 v{40+(i&1)}, s[32:35], s57 offen lds')
    a('s_waitcnt vmcnt(4)')
    lds_inc(a, VC, V1, C_TKV)
    a('v_lshlrev_b32 v56, 16, v32'); a('v_and_b32 v57, 0xffff0000, v32'); a('v_lshlrev_b32 v58, 16, v33'); a('v_and_b32 v59, 0xffff0000, v33')
    lds_spin(a, VC, 23, 4, C_TKV)
    st(2)
    U, KD, VD, KF = 64, 80, 98, 114
    for h in range(8): a(f'ds_read_b64_tr_b16 v[{KD+2*h}:{KD+2*h+1}], v52 offset:{KT - VT + 512*h}')
    a(f'ds_read_b64_tr_b16 v[{KD+16}:{KD+17}], v53 offset:{KT - VT + 512*8}')
    for h in range(6): a(f'ds_read_b64_tr_b16 v[{VD+2*h}:{VD+2*h+1}], v52 offset:{512*h}')
    a('s_waitcnt lgkmcnt(6)')
    for h in range(6, 8): a(f'ds_read_b64_tr_b16 v[{VD+2*h}:{VD+2*h+1}], v52 offset:{512*h}')
    for d in range(18):
        a(f'v_lshlrev_b32 v{KF+2*d}, 16, v{KD+d}'); a(f'v_and_b32 v{KF+2*d+1}, 0xffff0000, v{KD+d}')
    for hh in range(2):
        KV = 150
        ts = [4*y + 2*hh + p2 for p2 in range(2) for y in range(8)]
        for i, t in enumerate(ts): a(f'v_mul_f32 v{KV+i}, v56, v{KF+t+4}')
        for i, t in enumerate(ts): a(f'v_fmac_f32 v{KV+i}, v57, v{KF+t+3}')
        for i, t in enumerate(ts): a(f'v_fmac_f32 v{KV+i}, v58, v{KF+t+2}')
        for i, t in enumerate(ts): a(f'v_fmac_f32 v{KV+i}, v59, v{KF+t+1}')
        if hh == 0: a('s_waitcnt lgkmcnt(0)')
        for i, t in enumerate(ts):
            d = VD + 2*(t//4) + hh
            if t & 1: a(f'v_and_b32 v{26+(i%4)}, 0xffff0000, v{d}')
            else: a(f'v_lshlrev_b32 v{26+(i%4)}, 16, v{d}')
            a(f'v_mul_f32 v{KV+i}, v{KV+i}, v{26+(i%4)}')
        for p2 in range(2):
            O = 80 + 8*hh + 4*p2
            for jj in range(4): a(f'v_cvt_pk_bf16_f32 v{O+jj}, v{KV+8*p2+2*jj}, v{KV+8*p2+2*jj+1}')
            if STG:
                a(f'ds_write_b128 v{16 + 2*hh + p2}, v[{O}:{O+3}]')
            else:
                a(f's_mov_b32 s58, {WS_QKV + (2*hh+p2)*1024}')
                a(f'buffer_store_dwordx4 v[{O}:{O+3}], v54, s[44:47], s58 offen sc1')
        if hh == 0:
            a('s_cmp_lg_u32 s49, 0'); a('s_cbranch_scc1 NNL')
            a('buffer_load_dwordx2 v[62:63], v46, s[40:43], 0 offen sc1')
            a('NNL:')
    if STG:
        a('s_waitcnt lgkmcnt(0)')
        for i in range(4): a(f'ds_read_b128 v[{80+4*i}:{83+4*i}], v{(7,8,9,22)[i]}')
        for i in range(4):
            a(f's_waitcnt lgkmcnt({3-i})'); a(f's_mov_b32 s58, {WS_QKV + i*4*4096}')
            a(f'buffer_store_dwordx4 v[{80+4*i}:{83+4*i}], v54, s[44:47], s58 offen sc1')
    st.d(5)
    a('s_waitcnt vmcnt(5)')
    a('s_cmp_eq_u32 s49, 0'); a('s_cbranch_scc1 XL0'); a('s_waitcnt vmcnt(4)'); a('XL0:')
    st.d(6)
    lds_inc(a, VC, V1, C_TX)
    a('v_lshlrev_b32 v26, 5, v2')
    a('s_lshl_b32 s57, s2, 3'); a('s_lshl_b32 s58, s49, 1'); a('s_add_u32 s59, s57, s58'); a('s_lshl_b32 s57, s59, 11'); a('v_add_u32 v27, s57, v26')
    lds_spin(a, VC, 23, 4, C_TX)
    st.d(7)
    for ph in range(4):
        for h in range(2): a(f'ds_read_b64_tr_b16 v[{U+4*ph+2*h}:{U+4*ph+2*h+1}], v49 offset:{(16*h+ph)*128}')
    if STG:
        for ph in range(4):
            a(f's_waitcnt lgkmcnt({6-2*ph + ph})'); a(f'ds_write_b128 v{16+ph}, v[{U+4*ph}:{U+4*ph+3}]')
        a('s_waitcnt lgkmcnt(0)')
        for i in range(4): a(f'ds_read_b128 v[{U+4*i}:{U+4*i+3}], v{(7,8,9,22)[i]}')
        for i in range(4):
            a(f's_waitcnt lgkmcnt({3-i})'); a(f's_mov_b32 s58, {WS_QU + i*4*4096}')
            a(f'buffer_store_dwordx4 v[{U+4*i}:{U+4*i+3}], v54, s[44:47], s58 offen sc1')
    else:
      for ph in range(4):
        a(f's_waitcnt lgkmcnt({6-2*ph})')
        a(f's_mov_b32 s58, {WS_QU + ph*1024}')
        a(f'buffer_store_dwordx4 v[{U+4*ph}:{U+4*ph+3}], v54, s[44:47], s58 offen sc1')
    a('global_load_dwordx4 v[96:99], v27, s[4:5]'); a('global_load_dwordx4 v[100:103], v27, s[4:5] offset:16')
    a('global_load_dwordx4 v[104:107], v27, s[4:5] offset:2048'); a('global_load_dwordx4 v[108:111], v27, s[4:5] offset:2064')
    a('global_load_dwordx4 v[112:115], v26, s[74:75]'); a('global_load_dwordx4 v[116:119], v26, s[74:75] offset:16')
    st(3)
    a('s_lshl_b32 s66, s51, 8'); a('s_lshl_b32 s58, s56, 3'); a('s_add_u32 s66, s66, s58'); a(f's_add_u32 s66, s66, {WS_F1}')
    a('s_waitcnt vmcnt(10)')
    st.d(8)
    lds_inc(a, VC, V1, C_PKV)
    a('s_cmp_lg_u32 s49, 0'); a('s_cbranch_scc1 NPKV')
    a(f's_mov_b32 s71, {SPIN_MAX}')
    a('NONL:')
    a('v_readfirstlane_b32 s68, v62')
    a('s_memrealtime s[34:35]'); a('s_waitcnt lgkmcnt(0)')
    a('s_sub_u32 s34, s34, s68'); a('s_add_u32 s34, s34, 400')
    a('s_cmp_lt_u32 s34, 1600'); a('s_cselect_b32 s34, s68, 0')
    a('s_cmp_lg_u32 s34, 0'); a('s_cbranch_scc1 NONOK')
    a('s_sub_u32 s71, s71, 1'); a('s_cmp_eq_u32 s71, 0'); a('s_cbranch_scc1 NONOK')
    a(f's_cmp_lt_u32 s71, {SPIN_MAX - 64}'); a('s_cselect_b32 s34, s68, 0'); a('s_cmp_lg_u32 s34, 0'); a('s_cbranch_scc1 NONOK')
    a('s_sleep 2')
    a('buffer_load_dwordx2 v[62:63], v46, s[40:43], 0 offen sc1')
    a('s_waitcnt vmcnt(0)')
    a('s_branch NONL')
    a('NONOK:')
    lds_spin(a, VC, 23, 4, C_PKV)
    a('s_mov_b64 exec, 1')
    a('buffer_store_dwordx2 v[62:63], v46, s[44:47], s66 offen sc1')
    a('s_mov_b64 exec, -1')
    a('s_waitcnt vmcnt(7)')
    a('s_branch NPKV2')
    a('NPKV:')
    a('s_waitcnt vmcnt(6)')
    a('NPKV2:')
    if DIAG: a('s_getreg_b32 s98, hwreg(HW_REG_HW_ID)'); a('s_getreg_b32 s99, hwreg(HW_REG_XCC_ID)')
    lds_inc(a, VC, V1, C_PU)
    a('s_cmp_lg_u32 s49, 0'); a('s_cbranch_scc1 NPU')
    lds_spin(a, VC, 23, 4, C_PU)
    a('s_mov_b64 exec, 1')
    a('buffer_store_dwordx2 v[62:63], v46, s[44:47], s66 offen offset:128 sc1')
    a('s_mov_b64 exec, -1')
    a('NPU:')
    st(4)
    a('s_waitcnt vmcnt(2)')
    a('s_cmp_eq_u32 s49, 0'); a('s_cbranch_scc1 GOK'); a('s_waitcnt vmcnt(0)'); a('GOK:')
    for rr in range(2): a(f'v_mov_b32 v{120+rr}, 0'); a(f'v_mov_b32 v{122+rr}, 0')
    for i in range(4):
        for rr in range(2):
            a(f'v_dot2c_f32_bf16 v{120+rr}, v{96+8*rr+i}, v{112+i}'); a(f'v_dot2c_f32_bf16 v{122+rr}, v{100+8*rr+i}, v{116+i}')
    a('s_nop 3')
    for rr in range(2): a(f'v_add_f32 v{120+rr}, v{120+rr}, v{122+rr}')
    for sh in (1, 2, 4, 8):
        for rr in range(2): a(f'v_add_f32_dpp v{120+rr}, v{120+rr}, v{120+rr} row_shr:{sh} row_mask:0xf bank_mask:0xf bound_ctrl:0')
    for rr in range(2): a(f'v_add_f32_dpp v{120+rr}, v{120+rr}, v{120+rr} row_bcast:15 row_mask:0xa bank_mask:0xf')
    for rr in range(2): a(f'v_add_f32_dpp v{120+rr}, v{120+rr}, v{120+rr} row_bcast:31 row_mask:0xc bank_mask:0xf')
    a('v_readlane_b32 s57, v120, 63'); a('v_readlane_b32 s58, v121, 63')
    a('v_mov_b32 v120, s57'); a('v_mov_b32 v121, s58'); a('v_cndmask_b32 v120, v121, v120, s[64:65]')
    a('v_cvt_pk_bf16_f32 v120, v120, v120'); a('v_lshlrev_b32 v120, 16, v120')
    a(f's_mov_b32 s62, {LOG2E}'); a('v_mul_f32 v120, s62, v120'); a('v_sub_f32 v120, 0, v120')
    a('v_exp_f32 v120, v120'); a('v_add_f32 v120, 1.0, v120'); a('v_rcp_f32 v120, v120')
    a('v_cvt_pk_bf16_f32 v120, v120, v120'); a('v_lshlrev_b32 v120, 16, v120')
    a('v_sub_f32 v121, 1.0, v120'); a('v_cvt_pk_bf16_f32 v120, v120, v121')
    a('s_lshl_b32 s57, s59, 2'); a(f's_add_u32 s57, s57, {WS_G}'); a('v_lshlrev_b32 v121, 2, v2')
    a('s_mov_b64 exec, 3'); a('buffer_store_dword v120, v121, s[44:47], s57 offen sc1'); a('s_mov_b64 exec, -1')
    QR = 64
    a('s_lshl_b32 s58, s31, 12')
    def qload(t):
        for ph in range(4):
            a(f's_add_u32 s59, s58, {(WS_QU, WS_QKV)[t] + ph*1024}')
            a(f'buffer_load_dwordx4 v[{QR+16*t+4*ph}:{QR+16*t+4*ph+3}], v6, s[44:47], s59 offen sc1')
    a(f's_mul_i32 s59, s49, {REG}'); a(f's_add_u32 s59, s59, {QOFF + 128}')
    if STG:
        a('v_bfe_u32 v11, v2, 2, 2'); a('v_mul_u32_u24 v11, 1152, v11'); a('v_lshl_add_u32 v11, v5, 6, v11')
        a('v_and_b32 v12, 3, v2'); a('v_lshl_add_u32 v11, v12, 4, v11'); a('v_add_u32 v11, s59, v11')
    elif ROT:
        a('s_and_b32 s57, s31, 7'); a('s_lshl_b32 s57, s57, 7'); a('v_subrev_u32 v11, s57, v6'); a('v_and_b32 v11, 1023, v11'); a('v_add_u32 v11, s59, v11')
    else:
        a('v_add_u32 v11, s59, v6')
    a(f'v_add_u32 v10, {4*REG}, v11')
    a('s_cmp_lg_u32 s49, 0'); a('s_cbranch_scc1 POLLO')
    a('s_lshr_b32 s57, s30, 6'); a('s_lshl_b32 s57, s57, 8'); a(f's_add_u32 s57, s57, {WS_F1}')
    a('v_lshlrev_b32 v14, 3, v2'); a(f's_mov_b32 s71, {SPIN_MAX}'); a('s_mov_b32 s70, 0'); a('s_mov_b32 s33, 0')
    a('POLL:')
    a('s_mov_b64 exec, 0xffffffff')
    a('buffer_load_dwordx2 v[12:13], v14, s[44:47], s57 offen sc1')
    a('s_waitcnt vmcnt(0)')
    a('v_xor_b32 v12, v12, v62'); a('v_xor_b32 v13, v13, v63'); a('v_or_b32 v12, v12, v13'); a('v_cmp_ne_u32 vcc, 0, v12')
    a('s_mov_b64 exec, -1')
    a('s_mov_b32 s67, vcc_lo')
    a('s_cmp_lg_u32 s33, 0'); a('s_cbranch_scc1 G2D')
    a(f'ds_read_b32 v23, v{VC} offset:{C_PG}'); a('s_waitcnt lgkmcnt(0)'); a('v_readfirstlane_b32 s63, v23')
    a('s_cmp_lt_u32 s63, 3'); a('s_cbranch_scc1 G2D')
    a('s_lshl_b32 s63, s2, 3'); a(f's_add_u32 s63, s63, {WS_F2}')
    a('s_mov_b64 exec, 1')
    a('buffer_store_dwordx2 v[62:63], v46, s[44:47], s63 offen sc1')
    a('s_mov_b64 exec, -1')
    a('s_mov_b32 s33, 1')
    a('G2D:')
    a('s_sub_u32 s71, s71, 1'); a('s_cmp_eq_u32 s71, 0'); a('s_cselect_b32 s67, 0, s67')
    a('s_cmp_lg_u32 s70, 0'); a('s_cbranch_scc1 POLL2')
    a('s_and_b32 s63, s67, 0xffff'); a('s_cmp_lg_u32 s63, 0'); a('s_cbranch_scc1 POLLS')
    lds_inc(a, VC, V1, C_FKV)
    qload(1)
    a('s_mov_b32 s70, 1')
    a('POLL2:')
    a('s_lshr_b32 s63, s67, 16'); a('s_cmp_eq_u32 s63, 0'); a('s_cbranch_scc1 POLLD')
    a('s_cmp_eq_u32 s70, 2'); a('s_cbranch_scc1 POLLS')
    a('s_waitcnt vmcnt(0)')
    for ph in range(4): a(f'ds_write_b128 v10, v[{QR+16+4*ph}:{QR+16+4*ph+3}] offset:{ph*QST}')
    a('s_waitcnt lgkmcnt(0)')
    lds_inc(a, VC, V1, C_QB)
    a('s_mov_b32 s70, 2')
    a('POLLS:')
    a('s_sleep 1'); a('s_branch POLL')
    a('POLLD:')
    lds_inc(a, VC, V1, C_FU)
    qload(0)
    a('s_cmp_eq_u32 s70, 2'); a('s_cbranch_scc1 QB_DONE')
    a('s_branch QB_W')
    a('POLLO:')
    a('s_waitcnt vmcnt(0)')
    lds_inc(a, VC, V1, C_PG)
    lds_spin(a, VC, 23, 1, C_FKV)
    qload(1)
    a(f'ds_read_b32 v23, v{VC} offset:{C_FU}'); a('s_waitcnt lgkmcnt(0)'); a('v_readfirstlane_b32 s70, v23')
    a('s_cmp_ge_u32 s70, 1'); a('s_cbranch_scc1 POLLO2')
    a('s_waitcnt vmcnt(0)')
    for ph in range(4): a(f'ds_write_b128 v10, v[{QR+16+4*ph}:{QR+16+4*ph+3}] offset:{ph*QST}')
    a('s_waitcnt lgkmcnt(0)')
    lds_inc(a, VC, V1, C_QB)
    lds_spin(a, VC, 23, 1, C_FU)
    qload(0)
    a('s_branch QB_DONE')
    a('POLLO2:')
    qload(0)
    a('QB_W:')
    a('s_waitcnt vmcnt(4)')
    for ph in range(4): a(f'ds_write_b128 v10, v[{QR+16+4*ph}:{QR+16+4*ph+3}] offset:{ph*QST}')
    a('s_waitcnt lgkmcnt(0)')
    lds_inc(a, VC, V1, C_QB)
    a('QB_DONE:')
    st(5)
    a('s_waitcnt vmcnt(0)')
    for ph in range(4): a(f'ds_write_b128 v11, v[{QR+4*ph}:{QR+4*ph+3}] offset:{ph*QST}')
    a('s_waitcnt lgkmcnt(0)')
    lds_inc(a, VC, V1, C_QA)
    st(6)
    a('s_cmp_lg_u32 s49, 0'); a('s_cbranch_scc1 PAO')
    a('s_cmp_lg_u32 s33, 0'); a('s_cbranch_scc1 G2E')
    lds_spin(a, VC, 23, 3, C_PG)
    a('s_lshl_b32 s57, s2, 3'); a(f's_add_u32 s57, s57, {WS_F2}')
    a('s_mov_b64 exec, 1')
    a('buffer_store_dwordx2 v[62:63], v46, s[44:47], s57 offen sc1')
    a('s_mov_b64 exec, -1')
    a('G2E:')
    a(f's_mov_b32 s71, {SPIN_MAX}')
    a('PA:')
    a(f's_mov_b32 s57, {WS_F2}')
    a('buffer_load_dwordx4 v[64:67], v6, s[44:47], s57 offen sc1')
    a('buffer_load_dwordx4 v[68:71], v6, s[44:47], s57 offen offset:1024 sc1')
    a('s_waitcnt vmcnt(0)')
    for i in range(8): a(f'v_xor_b32 v{64+i}, v{64+i}, v{62+(i&1)}')
    for i in range(1, 8): a(f'v_or_b32 v64, v64, v{64+i}')
    a('v_cmp_ne_u32 vcc, 0, v64')
    a('s_cmp_eq_u64 vcc, 0'); a('s_cbranch_scc1 PAD')
    a('s_sub_u32 s71, s71, 1'); a('s_cmp_eq_u32 s71, 0'); a('s_cbranch_scc1 PAD')
    a('s_sleep 8'); a('s_branch PA')
    a('PAD:')
    lds_inc(a, VC, V1, C_F2)
    a('s_branch PAE')
    a('PAO:')
    lds_spin(a, VC, 23, 1, C_F2)
    a('PAE:')
    st(7)
    srd(a, 36, 76, 4 << 20)
    a('s_lshl_b32 s57, s49, 8'); a('v_lshl_add_u32 v49, v2, 2, s57')
    for c in range(8):
        a(f's_mov_b32 s59, {WS_G + 1024*c}'); a(f'buffer_load_dword v{96+c}, v49, s[44:47], s59 offen sc1')
    VF, VO = 50, 51
    a('v_lshrrev_b32 v10, 2, v4'); a(f'v_mul_u32_u24 v10, {TS}, v10'); a('v_and_b32 v11, 3, v2'); a('v_lshl_add_u32 v10, v11, 3, v10')
    a('v_mul_u32_u24 v11, 40, v5'); a('v_add_u32 v10, v10, v11')
    a('s_mul_i32 s59, s49, 160'); a(f's_add_u32 s59, s59, {TA}'); a(f'v_add_u32 v{VF}, s59, v10')
    a('s_lshl_b32 s59, s49, 17'); a('s_lshl_b32 s60, s30, 1'); a('s_add_u32 s59, s59, s60')
    a(f'v_lshlrev_b32 v10, 11, v2'); a(f'v_add_u32 v{VO}, s59, v10')
    a('s_waitcnt vmcnt(0)')
    F = 64
    for gi, g2 in enumerate(GROUPS):
        lds_spin(a, VC, 23, 4, C_A + 4*gi)
        lds_spin(a, VC, 23, 4, C_B + 4*gi)
        c0 = min(g2); npass = len(g2)
        for p in range(npass):
            off = 640 * (c0 + p)
            a(f'ds_read_b64_tr_b16 v[{F+4*p}:{F+4*p+1}], v{VF} offset:{off}')
            a(f'ds_read_b64_tr_b16 v[{F+4*p+2}:{F+4*p+3}], v{VF} offset:{off + 4*TS}')
        for p in range(npass):
            a(f's_waitcnt lgkmcnt({2*(npass-1-p)})')
            A0, A1, B0, B1 = F+4*p, F+4*p+1, F+4*p+2, F+4*p+3
            G = 96 + c0 + p
            a(f'v_lshlrev_b32 v34, 16, v{G}'); a(f'v_and_b32 v35, 0xffff0000, v{G}')
            a(f'v_lshlrev_b32 v26, 16, v{A0}'); a(f'v_and_b32 v27, 0xffff0000, v{A0}')
            a(f'v_lshlrev_b32 v28, 16, v{A1}'); a(f'v_and_b32 v29, 0xffff0000, v{A1}')
            a(f'v_lshlrev_b32 v30, 16, v{B0}'); a(f'v_and_b32 v31, 0xffff0000, v{B0}')
            a(f'v_lshlrev_b32 v32, 16, v{B1}'); a(f'v_and_b32 v33, 0xffff0000, v{B1}')
            for i in range(4): a(f'v_mul_f32 v{26+i}, v{26+i}, v34')
            for i in range(4): a(f'v_fmac_f32 v{26+i}, v{30+i}, v35')
            a(f'v_cvt_pk_bf16_f32 v{A0}, v26, v27'); a(f'v_cvt_pk_bf16_f32 v{A1}, v28, v29')
            a(f's_mov_b32 s59, {256*(c0+p) * 2048}')
            a(f'buffer_store_dwordx2 v[{A0}:{A1}], v{VO}, s[36:39], s59 offen')
        F = 104 if F == 64 else 64
        if gi == 0: st(8)
    st(9)
    a('s_branch KFIN')
    a('CONVP:')
    st.h = False
    a(f's_mul_i32 s67, s48, {REG}')
    a('v_lshrrev_b32 v27, 3, v2'); a('v_mul_u32_u24 v27, 1152, v27'); a('v_and_b32 v28, 7, v2')
    a('v_lshl_add_u32 v27, v28, 4, v27'); a(f'v_add_u32 v27, {QOFF}, v27')
    a('v_and_b32 v28, 1, v2'); a('v_lshlrev_b32 v28, 4, v28')
    a('v_cmp_gt_u32 vcc, 32, v2'); a('v_cndmask_b32 v27, v28, v27, vcc'); a('v_add_u32 v8, s67, v27')
    for r in range(16, 20): a(f'v_mov_b32 v{r}, 0')
    a('ds_write_b128 v8, v[16:19]')
    a('s_waitcnt lgkmcnt(0)')
    a('s_barrier')
    st(1)
    a('s_mov_b64 s[64:65], 1')
    a('v_lshlrev_b32 v6, 4, v2')
    a(f'v_mov_b32 v25, {CNT}'); a('v_mov_b32 v21, 1')
    a('v_cvt_f32_u32 v46, v4'); a('v_cvt_f32_u32 v47, v4')
    a('s_mov_b32 s52, 0x00010001'); a('s_mov_b32 s53, 0x00010001')
    a('s_mov_b32 s54, 0xff00ff00'); a('s_mov_b32 s55, 0xff00ff00')
    a(f's_mov_b32 s62, {LOG2E}'); a(f's_mov_b32 s63, {INV2PI}')
    a(f's_mul_i32 s57, s48, 1280'); a(f's_add_u32 s57, s57, {PAR}')
    a('v_lshl_add_u32 v32, v2, 4, s57')
    a('s_sub_u32 s58, s57, 0'); a('v_lshl_add_u32 v40, v5, 6, s58')
    a('s_add_u32 s57, s57, 1024'); a('v_lshl_add_u32 v33, v2, 2, s57'); a('v_lshl_add_u32 v41, v5, 4, s57')
    a(f's_waitcnt vmcnt({2 if TOUCH else 1})')
    st(6)
    for r in (10, 11, 12, 13, 14, 15): a(f'v_lshlrev_b32 v{r}, 16, v{r}')
    a('v_mul_f32 v14, s62, v14'); a('v_mul_f32 v10, s62, v10')
    a('v_exp_f32 v14, v14'); a('v_exp_f32 v10, v10')
    a('v_cvt_pk_bf16_f32 v14, v14, v14'); a('v_cvt_pk_bf16_f32 v10, v10, v10')
    a('v_lshlrev_b32 v14, 16, v14'); a('v_lshlrev_b32 v10, 16, v10')
    a('v_mul_f32 v28, v10, v14'); a('v_mul_f32 v29, v11, v14')
    a('v_mul_f32 v28, s62, v28'); a('v_sub_f32 v28, 0, v28'); a('v_mul_f32 v29, s63, v29')
    a('v_add_f32 v14, v14, v14'); a('v_mul_f32 v30, v12, v14'); a('v_mul_f32 v31, v13, v14')
    a('ds_write_b128 v32, v[28:31]')
    a('s_mov_b32 s58, 0x45000000')
    a('v_mul_f32 v34, s58, v28'); a('v_mul_f32 v35, s58, v29')
    a('v_exp_f32 v34, v34'); a('v_fract_f32 v35, v35'); a('v_cos_f32 v36, v35'); a('v_sin_f32 v37, v35')
    a('v_mul_f32 v36, v36, v34'); a('v_mul_f32 v37, v37, v34')
    a('v_mul_f32 v38, v31, v37'); a('v_mul_f32 v39, v31, v36')
    a('v_fma_f32 v38, v30, v36, -v38'); a('v_fma_f32 v39, -v30, v37, -v39')
    a('v_cvt_pk_bf16_f32 v38, v38, v39')
    a('ds_write_b32 v33, v38')
    a('s_waitcnt lgkmcnt(0)')
    st(7)
    KACC, KB = 48, 64
    srd(a, 36, 26, 4 << 20)
    def mid():
        a(f's_lshl_b32 s57, s50, 2'); a('s_add_u32 s57, s57, s69'); a(f's_cmp_lg_u32 s57, {4 + SKIT}'); a('s_cbranch_scc1 NOSK')
        a('s_lshl_b32 s62, s31, 12')
        for i in range(4):
            a(f's_add_u32 m0, s67, {32 + i*1024}'); a(f's_add_u32 s63, s62, {i*1024}')
            a('buffer_load_dwordx4 v6, s[36:39], s63 offen lds')
        a('NOSK:')
    kgen_loop(a, 40, KACC, KB, mid)
    st(2)
    a(f's_lshl_b32 s57, s49, 12'); a(f's_add_u32 s57, s57, {PART}'); a('v_lshl_add_u32 v40, v2, 4, s57')
    a('s_lshl_b32 s57, s49, 2'); a(f'v_add_u32 v41, s57, v{VC}')
    a('s_nop 7')
    a('s_cmp_eq_u32 s50, 0'); a('s_cbranch_scc1 AEXP')
    for b in range(4): a(f'ds_write_b128 v40, v[{KACC+4*b}:{KACC+4*b+3}] offset:{b*1024}')
    a('s_waitcnt lgkmcnt(0)')
    lds_inc(a, 41, V1, C_PART)
    a('s_waitcnt vmcnt(0)')
    a('s_add_u32 s57, s67, 32'); a('v_mov_b32 v10, s57')
    a('ds_read_u16 v11, v10'); a('s_waitcnt lgkmcnt(0)')
    a('v_lshlrev_b32 v11, 16, v11'); a('v_lshlrev_b32 v9, 16, v9'); a('v_add_f32 v11, v11, v9')
    a('v_cvt_pk_bf16_f32 v11, v11, v11'); a('ds_write_b16 v10, v11')
    a('s_branch CSET')
    a('AEXP:')
    lds_spin(a, 41, 42, 1, C_PART)
    for b in range(4): a(f'ds_read_b128 v[{64+4*b}:{64+4*b+3}], v40 offset:{b*1024}')
    a('s_waitcnt lgkmcnt(0)')
    for i in range(16): a(f'v_add_f32 v{KACC+i}, v{KACC+i}, v{64+i}')
    a('v_mov_b32 v84, 0'); a('v_cndmask_b32 v84, v84, v15, s[64:65]'); a(f'v_add_f32 v{KACC}, v{KACC}, v84')
    a('s_add_u32 s57, s67, 32'); a('v_mov_b32 v85, s57')
    gen_expand(a, KACC, 85, 88)
    a('CSET:')
    st(3)
    VA, VB, VIDX, VZERO, VT_, VX = 16, 17, 18, 19, 20, 22
    a('v_lshrrev_b32 v10, 2, v4'); a('v_and_b32 v11, 3, v2'); a('v_sub_u32 v11, v11, v10'); a('v_lshlrev_b32 v11, 3, v11')
    a('v_lshlrev_b32 v10, 6, v5'); a('v_sub_u32 v11, v11, v10'); a('s_add_u32 s59, s67, 224'); a(f'v_add_u32 v{VA}, s59, v11')
    a('v_lshlrev_b32 v10, 3, v4'); a('v_lshl_add_u32 v10, v5, 4, v10'); a(f's_add_u32 s59, s67, {QOFF + 8}'); a(f'v_add_u32 v{VB}, s59, v10')
    a('v_add_u32 v10, -1, v4'); a('v_and_b32 v10, 15, v10'); a('v_add_u32 v10, 48, v10')
    a('v_add_u32 v11, -16, v2'); a('v_cmp_gt_u32 vcc, 16, v2'); a('v_cndmask_b32 v10, v11, v10, vcc'); a(f'v_lshlrev_b32 v{VIDX}, 2, v10')
    a(f'v_mov_b32 v{VZERO}, 0')
    a(f's_mul_i32 s59, s49, {TS}'); a(f's_mul_i32 s60, s50, {4*TS}'); a('s_add_u32 s59, s59, s60'); a(f's_add_u32 s59, s59, {TA}')
    a('v_mul_u32_u24 v10, 40, v4'); a('v_lshl_add_u32 v10, v5, 3, v10'); a(f'v_add_u32 v{VT_}, s59, v10')
    a(f's_mul_i32 s59, s49, {REG}'); a(f's_add_u32 s59, s59, {QOFF + 128}')
    a('v_lshlrev_b32 v10, 3, v4'); a('v_lshl_add_u32 v10, v5, 1, v10'); a(f'v_add_u32 v{VX}, s59, v10')
    AF, CACC, TMP, XR = 32, 96, 140, 150
    BR = 96 + 4 * max(5, max(len(x) for x in GROUPS)); NB = min(NBR, (140 - BR) // 4)
    a('s_lshl_b32 s59, s50, 4'); a(f'v_add_u32 v24, s59, v{VC}')
    a('s_lshl_b32 s59, s50, 2'); a(f'v_subrev_u32 v26, s59, v{VC}')
    a('s_cmp_eq_u32 s50, 0'); a('s_cbranch_scc1 CONVS')
    if BPRIO: a(f's_setprio {BPRIO}')
    a('CONVS:')
    q = DSQ(a)
    def epi(gi, grp, acc):
        q.waitall()
        a('s_cmp_eq_u32 s50, 0'); a(f's_cbranch_scc0 EPB{gi}')
        for j, c in enumerate(grp):
            r = XR + 2*(j % 4)
            a(f'v_cvt_pk_bf16_f32 v{r}, v{acc(c)}, v{acc(c)+1}'); a(f'v_cvt_pk_bf16_f32 v{r+1}, v{acc(c)+2}, v{acc(c)+3}')
            a(f'ds_write_b64 v{VT_}, v[{r}:{r+1}] offset:{640*c}')
            if j % 4 == 3: a('s_waitcnt lgkmcnt(0)')
        a(f's_branch EPJ{gi}')
        a(f'EPB{gi}:')
        if gi == 0: lds_spin(a, VC, 23, 4, C_QA)
        for j0 in range(0, len(grp), 4):
            sub = grp[j0:j0+4]
            n = 0
            for j, c in enumerate(sub):
                for ph in range(4): a(f'ds_read_u16_d16_hi v{XR+4*j+ph}, v{VX} offset:{ph*1152+128*c}')
                if j % 2 == 1: a('s_waitcnt lgkmcnt(4)')
            a('s_waitcnt lgkmcnt(0)')
            for j, c in enumerate(sub):
                for i in range(4): a(f'v_and_b32 v{XR+4*j+i}, 0xffff0000, v{XR+4*j+i}')
                for i in range(4): a(f'v_mul_f32 v{XR+4*j+i}, v{XR+4*j+i}, v{acc(c)+i}')
                a(f'v_cvt_pk_bf16_f32 v{XR+4*j}, v{XR+4*j}, v{XR+4*j+1}'); a(f'v_cvt_pk_bf16_f32 v{XR+4*j+1}, v{XR+4*j+2}, v{XR+4*j+3}')
                a(f'ds_write_b64 v{VT_}, v[{XR+4*j}:{XR+4*j+1}] offset:{640*c}')
            a('s_waitcnt lgkmcnt(0)')
        a(f'EPJ{gi}:')
        a('s_waitcnt lgkmcnt(0)')
        lds_inc(a, 24, V1, C_A + 4*gi); q.n += 1
    def pre():
        lds_spin(a, 26, 23, 4, C_QA); st(4)
    conv(a, q, GROUPS, AF, CACC, BR, NB, TMP, VA, VB, VIDX, VZERO, epi, pre, PDROP)
    st(5)
    a('KFIN:')
    st(10); st.dump(11)
    a('KEND:')
    a('s_endpgm')
    return a, 168, LDS

SKIT = int(os.environ.get('SKIT', '2'))
TOUCH = int(os.environ.get('TOUCH', '0'))
MAP = int(os.environ.get('MAP', '0'))
STG = int(os.environ.get('STG', '1'))
XW = int(os.environ.get('XW', '0'))
PDROP = eval(os.environ.get('PDROP', '(1,2,0)'))
QST = 256 if STG else 1152
STGB = PART + 16384
ROT = int(os.environ.get('ROT', '0'))
BPRIO = int(os.environ.get('BPRIO', '1'))
def build(path):
    hdr = open('cdna_kernels/' + NAME + '.s.ref').read().split('\n')
    head = [l for l in hdr[:18] if l.startswith(';') and '@launch' not in l and 'Override' not in l and 'grid=ceil' not in l]
    k, nv, lds = gen()
    out = head[:]
    out.append(f'; @launch grid=(256,1,1) block=(768,1,1) lds={lds}')
    out.append('.amdgcn_target "amdgcn-amd-amdhsa--gfx950"'); out.append('.text')
    out.append(f'.globl {KN}'); out.append('.p2align 8'); out.append(f'.type {KN},@function')
    lines, nn = k.finalize(); print('instrs', len(lines), 'nops', nn)
    out += lines
    out.append('.section .rodata,"a"'); out.append(kd(KN, nv))
    open(path, 'w').write('\n'.join(out) + '\n')

if __name__ == '__main__':
    if len(sys.argv) > 2:
        gen1.STAMPS = True
        if sys.argv[2] == 'c': gen1.STAMPOP = 's_memtime'
    build(sys.argv[1])
```
